```python
import torch

def _softmax(x, axis=-1):
    return torch.softmax(x, dim=axis)
def _gelu(x):
    return torch.nn.functional.gelu(x, approximate="tanh")
def _silu(x):
    return torch.nn.functional.silu(x)
def _sigmoid(x):
    return torch.sigmoid(x)
def _layernorm(x, axis=-1, eps=1e-5):
    m = x.mean(dim=axis, keepdim=True)
    v = x.var(dim=axis, keepdim=True, unbiased=False)
    return (x - m) / torch.sqrt(v + eps)
def _scatter_add(tgt, idx, src, axis=0):
    return tgt.clone().index_add_(axis, idx, src)
def _segment_sum(src, seg, n):
    out = torch.zeros((n,) + src.shape[1:], dtype=src.dtype)
    return out.index_add_(0, seg, src)
def _pad(x, pw):
    flat = tuple(v for pair in reversed(pw) for v in pair)
    return torch.nn.functional.pad(x, flat)

kernel_name = 'standalone__weight_only_int_quip_2__prompt'

def setup_inputs():

    _w = (lambda a: (lambda t: t.to(torch.bfloat16) if t.is_floating_point() else t)(torch.as_tensor(a)))
    B, S, D, F = 1, 2048, 1024, 3584
    nbits = max(2, min(4, int(8)))
    G = 64 if 64 > 0 else D
    D = (D // G) * G
    ng = D // G
    qmax = 1 << nbits
    qw = torch.randint(0, qmax, (D, F)).to(torch.int32)
    zp = torch.randint(0, qmax, (ng, F)).to(float)
    sc = torch.abs((lambda *s: torch.randn(*s, dtype=torch.bfloat16) * 0.05)(ng, F)).to(float) * 0.1 + 0.02
    return {
        "x": _w((lambda *s: torch.randn(*s, dtype=torch.bfloat16) * 0.05)(B, S, D)),
        "qw": _w(qw),
        "scales": _w(sc),
        "zeros": _w(zp),
    }

def reference(x, qw, scales, zeros):
    B, S, D = x.shape
    ng, F = scales.shape
    G = D // ng
    s = (lambda x, n, axis: torch.repeat_interleave(x, n, dim=axis))(scales, G, axis=0)
    z = (lambda x, n, axis: torch.repeat_interleave(x, n, dim=axis))(zeros, G, axis=0)
    w = ((lambda x, dt: x.to(dt))(qw, x.dtype) - z) * s
    return torch.einsum("bsd,df->bsf", x, w)
```

```python
import sys, json

NAME = "standalone__weight_only_int_quip_2__prompt"
M, K, N = 2048, 1024, 3584
XB, QB, SB, OB = M*K*2, K*N*4, 16*N*2, M*N*2
WB = 131072
WSLOT = 14336
LDS = WB + 2*WSLOT

DEF = dict(
    mfma=1, deq=1, store=1, xload=1, qload=1, sload=1, reads=1, wwrite=1,
    stamps=0, prio=1, xcdmap=4, deqmode="fma", stpol="", xpol="", qpol="",
    qmask=1, nstage=16,
)

class Gen:
    def __init__(s, **kw):
        s.o = dict(DEF); s.o.update(kw)
        s.L = []
        s.vm = []
    def a(s, t): s.L.append("    " + t)
    def lab(s, t): s.L.append(t + ":")
    def vmop(s, text, tag):
        s.a(text); s.vm.append(tag)
    def vmwait(s, tag):
        idx = [i for i, t in enumerate(s.vm) if t == tag]
        if not idx: return
        n = len(s.vm) - 1 - idx[-1]
        assert n <= 63, n
        s.a(f"s_waitcnt vmcnt({n})")
        s.vm = s.vm[idx[-1]+1:]

    def setup(s):
        a, o = s.a, s.o
        a("s_cmp_ge_u32 s2, 256")
        a("s_cbranch_scc1 L_end")
        a("s_load_dwordx8 s[4:11], s[0:1], 0")
        a("s_load_dwordx2 s[12:13], s[0:1], 32")
        if o["stamps"]:
            a("s_load_dwordx2 s[14:15], s[0:1], 48")
            a("s_memrealtime s[60:61]")
            a("s_memtime s[62:63]")
        a("v_lshrrev_b32 v1, 6, v0")
        a("v_and_b32 v0, 63, v0")
        xm = o["xcdmap"]
        lg = {1:0,2:1,4:2,8:3,16:4,32:5}[xm]
        a("s_and_b32 s36, s2, 7")
        a("s_lshr_b32 s37, s2, 3")
        if xm <= 4:
            assert xm == 4
            a("s_and_b32 s38, s37, 3")
            a("s_lshl_b32 s36, s36, 2")
            a("s_add_u32 s36, s36, s38")
            a("s_lshr_b32 s37, s37, 2")
        elif xm == 8:
            a("s_and_b32 s38, s37, 7")
            a("s_and_b32 s40, s36, 3")
            a("s_lshl_b32 s40, s40, 3")
            a("s_lshr_b32 s36, s36, 2")
            a("s_lshl_b32 s36, s36, 2")
            a("s_lshr_b32 s37, s37, 3")
            a("s_add_u32 s37, s37, s36")
            a("s_add_u32 s36, s40, s38")
        elif xm == 32:
            a("s_and_b32 s36, s2, 31")
            a("s_lshr_b32 s37, s2, 5")
        a("v_readfirstlane_b32 s39, v1")
        a("s_waitcnt lgkmcnt(0)")
        for base, src, size in ((16, 4, XB), (20, 6, QB), (24, 8, SB), (28, 10, SB), (32, 12, OB)):
            a(f"s_mov_b32 s{base}, s{src}")
            a(f"s_mov_b32 s{base+1}, s{src+1}")
            a(f"s_mov_b32 s{base+2}, {size}")
            a(f"s_mov_b32 s{base+3}, 0x20000")
        a("s_cmp_ge_u32 s39, 4")
        a("s_cbranch_scc1 L_prod")

    def stamp(s, i):
        if s.o["stamps"]:
            s.a(f"s_memtime s[{64+2*i}:{65+2*i}]") if False else None

    ACC = 128
    XF = (8, 24)
    WF = (40, 68)
    VX = {(0,0):96, (1,0):97, (0,1):98, (1,1):99}
    VW = {(0,0):100, (1,0):101, (0,1):102, (1,1):103}
    def acc(s, j, mt): b = s.ACC + 4*(j*4+mt); return f"v[{b}:{b+3}]"
    def accr(s, j, mt, r): return f"v{s.ACC + 4*(j*4+mt) + r}"

    def c_reads(s, step):
        t, h, b = step // 2, step % 2, step % 2
        xs, ws = t % 4, t % 2
        R = []
        xr = [f"ds_read_b128 v[{s.XF[b]+4*mt}:{s.XF[b]+4*mt+3}], v{s.VX[(h, xs>>1)]} offset:{(xs&1)*32768 + mt*2048}" for mt in range(4)]
        wr = [f"ds_read_b128 v[{s.WF[b]+4*j}:{s.WF[b]+4*j+3}], v{s.VW[(h, j&1)]} offset:{ws*WSLOT + j*2048}" for j in range(7)]
        return [wr[0]] + xr + wr[1:]

    def c_step(s, step, reads):
        a, o = s.a, s.o
        b = step % 2
        ri = 0
        n = 0
        first = step == 0
        for j in range(7):
            for mt in range(4):
                if o["mfma"]:
                    c = "0" if first else s.acc(j, mt)
                    a(f"v_mfma_f32_16x16x32_bf16 {s.acc(j,mt)}, v[{s.WF[b]+4*j}:{s.WF[b]+4*j+3}], v[{s.XF[b]+4*mt}:{s.XF[b]+4*mt+3}], {c}")
                n += 1
                if ri < len(reads) and n >= 2 and (n % o.get("rdgap", 1) == 0):
                    if o["reads"]: a(reads[ri])
                    ri += 1
        while ri < len(reads):
            if o["reads"]: a(reads[ri])
            ri += 1

    def consumer(s):
        a, o = s.a, s.o
        ns = o["nstage"]
        if o["prio"]: a("s_setprio 2")
        a("v_and_b32 v1, 15, v0")
        a("v_lshrrev_b32 v2, 4, v0")
        a("v_lshrrev_b32 v3, 1, v1")
        a("v_xor_b32 v3, v2, v3")
        a("v_lshlrev_b32 v3, 4, v3")
        a("v_lshl_add_u32 v3, v1, 7, v3")
        a("s_lshl_b32 s40, s39, 13")
        a(f"v_add_u32 v{s.VX[(0,0)]}, s40, v3")
        a(f"v_xor_b32 v{s.VX[(1,0)]}, 64, v{s.VX[(0,0)]}")
        a(f"v_add_u32 v{s.VX[(0,1)]}, 0x10000, v{s.VX[(0,0)]}")
        a(f"v_add_u32 v{s.VX[(1,1)]}, 0x10000, v{s.VX[(1,0)]}")
        a(f"v_add_u32 v{s.VW[(0,0)]}, {WB}, v3")
        a(f"v_xor_b32 v{s.VW[(1,0)]}, 64, v{s.VW[(0,0)]}")
        a(f"v_xor_b32 v{s.VW[(0,1)]}, 16, v{s.VW[(0,0)]}")
        a(f"v_xor_b32 v{s.VW[(1,1)]}, 16, v{s.VW[(1,0)]}")
        a("s_mul_i32 s41, s39, 15360")
        a("v_mul_u32_u24 v4, 240, v1")
        a("v_add_u32 v4, s41, v4")
        a("v_lshl_add_u32 v104, v2, 4, v4")
        a("v_lshl_add_u32 v105, v2, 3, v4")
        a("v_mul_u32_u24 v5, 37, v0")
        a("v_lshrrev_b32 v5, 9, v5")
        a("v_mul_u32_u24 v6, 14, v5")
        a("v_sub_u32 v6, v0, v6")
        a("v_mul_u32_u24 v7, 240, v5")
        a("v_lshl_add_u32 v7, v6, 4, v7")
        a("v_add_u32 v106, s41, v7")
        a("s_lshl_b32 s42, s37, 8")
        a("s_lshl_b32 s43, s39, 6")
        a("s_add_u32 s42, s42, s43")
        a("s_mul_i32 s42, s42, 7168")
        a("s_mul_i32 s43, s36, 224")
        a("s_add_u32 s42, s42, s43")
        a("v_mul_u32_u24 v7, 7168, v5")
        a("v_lshl_add_u32 v7, v6, 4, v7")
        a("v_add_u32 v107, s42, v7")
        if not (o["reads"]):
            for r in range(8, 96): a(f"v_mov_b32 v{r}, 0")
        a("s_barrier")
        if o["stamps"]: a("s_memtime s[64:65]")
        if o["reads"]:
            for r in s.c_reads(0): a(r)
        a("s_waitcnt lgkmcnt(0)")
        nsteps = 2*ns
        for step in range(nsteps):
            if step % 2 == 1 and step < nsteps - 1:
                a("s_waitcnt lgkmcnt(0)")
                a("s_barrier")
                if o["stamps"]:
                    t = (step+1)//2
                    a(f"s_memtime s[{64+2*t}:{65+2*t}]")
            elif step > 0:
                a("s_waitcnt lgkmcnt(0)")
            reads = s.c_reads(step+1) if step + 1 < nsteps else []
            s.c_step(step, reads)
        if o["stamps"]:
            a("s_memtime s[96:97]")
        s.epilogue()
        if o["stamps"]: s.write_stamps()
        a("s_endpgm")

    def epilogue(s):
        a, o = s.a, s.o
        if not o["store"]:
            return
        if not o["mfma"]:
            for r in range(128, 240): a(f"v_mov_b32 v{r}, 0")
        a("s_nop 7")
        a("s_nop 1")
        T = 8
        sp = o["stpol"]
        for half in range(2):
            for mt in (2*half, 2*half+1):
                t = T + 16*(mt & 1)
                for u in range(3):
                    d = t + 4*u
                    a(f"v_cvt_pk_bf16_f32 v{d}, {s.accr(2*u,mt,0)}, {s.accr(2*u,mt,1)}")
                    a(f"v_cvt_pk_bf16_f32 v{d+1}, {s.accr(2*u,mt,2)}, {s.accr(2*u,mt,3)}")
                    a(f"v_cvt_pk_bf16_f32 v{d+2}, {s.accr(2*u+1,mt,0)}, {s.accr(2*u+1,mt,1)}")
                    a(f"v_cvt_pk_bf16_f32 v{d+3}, {s.accr(2*u+1,mt,2)}, {s.accr(2*u+1,mt,3)}")
                    a(f"ds_write_b128 v104, v[{d}:{d+3}] offset:{mt*3840 + u*64}")
                d = t + 12
                a(f"v_cvt_pk_bf16_f32 v{d}, {s.accr(6,mt,0)}, {s.accr(6,mt,1)}")
                a(f"v_cvt_pk_bf16_f32 v{d+1}, {s.accr(6,mt,2)}, {s.accr(6,mt,3)}")
                a(f"ds_write_b64 v105, v[{d}:{d+1}] offset:{mt*3840 + 192}")
            a("s_waitcnt lgkmcnt(0)")
            a("s_mov_b32 exec_hi, 0x00ffffff")
            R = 40 + 32*half
            for i in range(8):
                ii = half*8 + i
                a(f"ds_read_b128 v[{R+4*i}:{R+4*i+3}], v106 offset:{960*ii}")
            for i in range(8):
                ii = half*8 + i
                a(f"s_mov_b32 s44, {28672*ii}")
                a(f"s_waitcnt lgkmcnt({7-i})")
                a(f"buffer_store_dwordx4 v[{R+4*i}:{R+4*i+3}], v107, s[32:35], s44 offen {sp}")
            a("s_mov_b64 exec, -1")

    def write_stamps(s):
        a = s.a
        a("s_waitcnt vmcnt(0)")
        a("s_memtime s[98:99]")
        a("s_memrealtime s[100:101]")
        a("s_waitcnt lgkmcnt(0)")
        a("s_cmp_lg_u32 s39, 0")
        a("s_cbranch_scc1 L_nostamp")
        a("s_mov_b32 s16, s14")
        a("s_mov_b32 s17, s15")
        a("s_mov_b32 s18, 0x100000")
        a("s_mov_b32 s19, 0x20000")
        a("s_lshl_b32 s45, s2, 8")
        a("v_mov_b32 v1, s45")
        vals = [60, 62] + [64+2*t for t in range(16)] + [96, 98, 100]
        for i, r in enumerate(vals):
            a(f"v_mov_b32 v2, s{r}")
            a(f"buffer_store_dword v2, v1, s[16:19], 0 offen offset:{4*i}")
        a("s_getreg_b32 s45, hwreg(HW_REG_XCC_ID)")
        a("v_mov_b32 v2, s45")
        a(f"buffer_store_dword v2, v1, s[16:19], 0 offen offset:{4*len(vals)}")
        a("s_waitcnt vmcnt(0)")
        s.lab("L_nostamp")

    PX = 8
    PQ = 16
    PS = 24
    PWA, PWB = 25, 26
    SF = 28
    ZT = 36
    PK = 40
    TT = 56
    QS = (64, 96, 128)
    SS = (160, 164, 168)

    def p_xload(s, t):
        a, o = s.a, s.o
        if not o["xload"]: return
        slot = t % 4
        a(f"s_movk_i32 s46, {t*128}")
        for i in range(8):
            if i % 4 == 0:
                a(f"s_add_u32 m0, s47, {slot*32768 + (i>>2)*4096}")
                a("s_nop 0")
            s.vmop(f"buffer_load_dwordx4 v{s.PX+i}, s[16:19], s46 offen offset:{(i&3)*1024} lds {o['xpol']}", ("x", t))

    def p_qload(s, t, i):
        o = s.o
        if not o["qload"]: return
        r = s.QS[t % 3] + 4*i
        s.vmop(f"buffer_load_dwordx4 v[{r}:{r+3}], v{s.PQ+i}, s[20:23], s48 offen {o['qpol']}", ("q", t, i))
    def p_qsoff(s, t):
        s.a(f"s_mov_b32 s48, {t*64*14336}")
    def p_sload(s, t):
        o = s.o
        if not o["sload"]: return
        r = s.SS[t % 3]
        s.a(f"s_movk_i32 s49, {t*7168}") if t*7168 < 32768 else s.a(f"s_mov_b32 s49, {t*7168}")
        s.vmop(f"buffer_load_dwordx2 v[{r}:{r+1}], v{s.PS}, s[24:27], s49 offen", ("s", t))
        s.vmop(f"buffer_load_dwordx2 v[{r+2}:{r+3}], v{s.PS}, s[28:31], s49 offen", ("s", t))
    def mask(s, on):
        if s.o["qmask"]:
            s.a("s_mov_b64 exec, s[50:51]" if on else "s_mov_b64 exec, -1")

    def p_deq(s, t, tn):
        a, o = s.a, s.o
        sl = s.SS[t % 3]
        q = s.QS[t % 3]
        s.vmwait(("s", t))
        if o["deq"]:
            a(f"v_lshlrev_b32 v{s.SF}, 16, v{sl}")
            a(f"v_and_b32 v{s.SF+1}, 0xffff0000, v{sl}")
            a(f"v_lshlrev_b32 v{s.SF+2}, 16, v{sl+1}")
            a(f"v_and_b32 v{s.SF+3}, 0xffff0000, v{sl+1}")
            a(f"v_lshlrev_b32 v{s.ZT}, 16, v{sl+2}")
            a(f"v_and_b32 v{s.ZT+1}, 0xffff0000, v{sl+2}")
            a(f"v_lshlrev_b32 v{s.ZT+2}, 16, v{sl+3}")
            a(f"v_and_b32 v{s.ZT+3}, 0xffff0000, v{sl+3}")
            for e in range(4):
                a(f"v_mul_f32_e64 v{s.SF+4+e}, -v{s.ZT+e}, v{s.SF+e}")
            if o["deqmode"] == "mix":
                for e in range(4):
                    a(f"v_mul_f32 v{s.SF+e}, 0x4b800000, v{s.SF+e}")
        if tn is not None:
            s.p_sload(tn)
            s.p_qsoff(tn)
        for ip in range(4):
            s.vmwait(("q", t, 2*ip+1))
            if o["deq"]:
                r0, r1 = q + 8*ip, q + 8*ip + 4
                T = s.TT
                if o["deqmode"] == "fma":
                    for e in range(4):
                        a(f"v_cvt_f32_i32 v{T+2*e}, v{r0+e}")
                        a(f"v_cvt_f32_i32 v{T+2*e+1}, v{r1+e}")
                    for e in range(4):
                        a(f"v_fma_f32 v{T+2*e}, v{T+2*e}, v{s.SF+e}, v{s.SF+4+e}")
                        a(f"v_fma_f32 v{T+2*e+1}, v{T+2*e+1}, v{s.SF+e}, v{s.SF+4+e}")
                elif o["deqmode"] == "pk":
                    for e in range(4):
                        a(f"v_cvt_f32_i32 v{T+2*e}, v{r0+e}")
                        a(f"v_cvt_f32_i32 v{T+2*e+1}, v{r1+e}")
                    for e in range(4):
                        se, ce = s.SF+e, s.SF+4+e
                        sb, cb = se & ~1, ce & ~1
                        a(f"v_pk_fma_f32 v[{T+2*e}:{T+2*e+1}], v[{T+2*e}:{T+2*e+1}], v[{sb}:{sb+1}], v[{cb}:{cb+1}] op_sel:[0,{se&1},{ce&1}] op_sel_hi:[1,{se&1},{ce&1}]")
                elif o["deqmode"] == "mix":
                    for e in range(4):
                        a(f"v_fma_mix_f32 v{T+2*e}, v{r0+e}, v{s.SF+e}, v{s.SF+4+e} op_sel_hi:[1,0,0]")
                        a(f"v_fma_mix_f32 v{T+2*e+1}, v{r1+e}, v{s.SF+e}, v{s.SF+4+e} op_sel_hi:[1,0,0]")
                for e in range(4):
                    a(f"v_cvt_pk_bf16_f32 v{s.PK+4*e+ip}, v{T+2*e}, v{T+2*e+1}")
            if tn is not None:
                s.p_qload(tn, 2*ip); s.p_qload(tn, 2*ip+1)
        if o["wwrite"]:
            ws = (t % 2) * WSLOT
            for e in range(4):
                ad = s.PWA if e < 2 else s.PWB
                a(f"ds_write_b128 v{ad}, v[{s.PK+4*e}:{s.PK+4*e+3}] offset:{ws + (e&1)*128}")

    def producer(s):
        a, o = s.a, s.o
        ns = o["nstage"]
        s.lab("L_prod")
        a("s_sub_u32 s39, s39, 4")
        a("v_and_b32 v1, 31, v0")
        a("v_lshrrev_b32 v2, 5, v0")
        a("s_lshl_b32 s40, s39, 1")
        a("v_add_u32 v2, s40, v2")
        a("s_mov_b32 s41, 114688")
        a("v_mul_lo_u32 v3, v2, s41")
        a("v_lshl_add_u32 v3, v1, 4, v3")
        a("s_mul_i32 s42, s36, 448")
        a(f"v_add_u32 v{s.PQ}, s42, v3")
        for i in range(1, 8):
            a(f"v_add_u32 v{s.PQ+i}, {14336*i}, v{s.PQ}")
        a("s_mul_i32 s42, s36, 224")
        a("v_lshlrev_b32 v3, 3, v1")
        a(f"v_add_u32 v{s.PS}, s42, v3")
        a("s_mov_b32 s50, 0x0fffffff")
        a("s_mov_b32 s51, 0x0fffffff")
        s.mask(1)
        s.p_sload(0); s.p_qsoff(0)
        for i in range(8): s.p_qload(0, i)
        s.mask(0)
        a("v_lshrrev_b32 v3, 3, v0")
        a("s_lshl_b32 s42, s37, 8")
        a("s_lshl_b32 s43, s39, 6")
        a("s_add_u32 s42, s42, s43")
        a("v_add_u32 v3, s42, v3")
        a("v_lshlrev_b32 v3, 11, v3")
        a("v_and_b32 v4, 7, v0")
        a("v_lshrrev_b32 v5, 4, v0")
        a("v_xor_b32 v4, v4, v5")
        a(f"v_lshl_add_u32 v{s.PX}, v4, 4, v3")
        a(f"v_xor_b32 v4, 64, v{s.PX}")
        for i in range(1, 8):
            src = f"v4" if i & 1 else f"v{s.PX}"
            a(f"v_add_u32 v{s.PX+i}, {i*16384 - (i&3)*1024}, {src}")
        a("s_lshl_b32 s47, s39, 13")
        s.p_xload(0)
        s.mask(1)
        s.p_sload(1); s.p_qsoff(1)
        for i in range(8): s.p_qload(1, i)
        s.mask(0)
        s.p_xload(1)
        s.mask(1)
        s.p_sload(2); s.p_qsoff(2)
        for i in range(8): s.p_qload(2, i)
        s.mask(0)
        a("v_lshrrev_b32 v3, 3, v1")
        a("v_lshlrev_b32 v3, 5, v3")
        a("v_and_b32 v4, 1, v1")
        a("v_lshl_add_u32 v3, v4, 4, v3")
        a("v_bfe_u32 v4, v1, 1, 2")
        a("v_lshl_add_u32 v3, v4, 2, v3")
        a("v_lshlrev_b32 v4, 2, v1")
        a("v_cmp_le_u32 vcc, 24, v1")
        a("s_nop 1")
        a("v_cndmask_b32 v3, v3, v4, vcc")
        a("v_bfe_u32 v4, v3, 1, 3")
        a("v_bfe_u32 v5, v3, 4, 1")
        a("v_xor_b32 v4, v4, v5")
        a("v_xor_b32 v4, v4, v2")
        a("v_lshlrev_b32 v3, 7, v3")
        a("v_lshl_add_u32 v3, v4, 4, v3")
        a(f"v_add_u32 v{s.PWA}, {WB}, v3")
        a(f"v_add_u32 v3, {WB+256}, v3")
        a(f"v_xor_b32 v{s.PWB}, 16, v3")
        if not o["deq"]:
            for r in range(s.PK, s.PK+16): a(f"v_mov_b32 v{r}, 0")
        for t in range(-1, ns-1):
            if t + 3 < ns: s.p_xload(t+3)
            s.mask(1)
            s.p_deq(t+1, t+4 if t+4 < ns else None)
            s.mask(0)
            s.vmwait(("x", t+1))
            a("s_waitcnt lgkmcnt(0)")
            a("s_barrier")
        a("s_endpgm")

    def build(s):
        s.setup()
        s.consumer()
        s.producer()
        s.lab("L_end")
        s.a("s_endpgm")
        hdr = open("cdna_kernels/%s.s.ref" % NAME).read().split("; Override launch")[0]
        out = hdr + f"; @launch grid=(256,1,1) block=(512,1,1) lds={LDS}\n"
        out += f'.amdgcn_target "amdgcn-amd-amdhsa--gfx950"\n.text\n.globl {NAME}_kernel\n.p2align 8\n.type {NAME}_kernel,@function\n{NAME}_kernel:\n'
        out += "\n".join(s.L) + "\n"
        out += f""".section .rodata,"a"
.p2align 6
.amdhsa_kernel {NAME}_kernel
  .amdhsa_next_free_vgpr 256
  .amdhsa_next_free_sgpr 102
  .amdhsa_accum_offset 256
  .amdhsa_group_segment_fixed_size 0
  .amdhsa_kernarg_size 56
  .amdhsa_user_sgpr_count 2
  .amdhsa_user_sgpr_kernarg_segment_ptr 1
  .amdhsa_system_sgpr_workgroup_id_x 1
  .amdhsa_float_denorm_mode_32 3
.end_amdhsa_kernel
"""
        return out

if __name__ == "__main__":
    out = sys.argv[1]
    kw = {}
    for x in sys.argv[2:]:
        k, v = x.split("=")
        kw[k] = int(v) if v.lstrip("-").isdigit() else v.replace("_", " ") if k.endswith("pol") else v
    open(out, "w").write(Gen(**kw).build())
```

```python
import sys, json

NAME = "standalone__weight_only_int_quip_2__prompt"
M, K, N = 2048, 1024, 3584
XB, QB, SB, OB = M*K*2, K*N*4, 16*N*2, M*N*2
WB = 131072
WSLOT = 14336
LDS = WB + 2*WSLOT

DEF = dict(
    mfma=1, deq=1, store=1, xload=1, qload=1, sload=1, reads=1, wwrite=1,
    stamps=0, prio=1, xcdmap=4, deqmode="fma", stpol="", xpol="", qpol="",
    qmask=1, nstage=16, reps=1, xlin=0, qlin=0, xrot=0, fixx=0, fixq=0, pfx=0, pfq=0, dbg=0,
)

class Gen:
    def __init__(s, **kw):
        s.o = dict(DEF); s.o.update(kw)
        s.L = []
        s.vm = []
    def a(s, t): s.L.append("    " + t)
    def lab(s, t): s.L.append(t + ":")
    def vmop(s, text, tag):
        s.a(text); s.vm.append(tag)
    def vmwait(s, tag):
        idx = [i for i, t in enumerate(s.vm) if t == tag]
        if not idx: return
        n = len(s.vm) - 1 - idx[-1]
        assert n <= 63, n
        s.a(f"s_waitcnt vmcnt({n})")
        s.vm = s.vm[idx[-1]+1:]

    def setup(s):
        a, o = s.a, s.o
        a("s_cmp_ge_u32 s2, 256")
        a("s_cbranch_scc1 L_end")
        a("s_load_dwordx8 s[4:11], s[0:1], 0")
        a("s_load_dwordx2 s[12:13], s[0:1], 32")
        if o["stamps"]:
            a("s_load_dwordx2 s[14:15], s[0:1], %d" % (40 if o["dbg"] else 48))
            a("s_memrealtime s[60:61]")
            a("s_memtime s[62:63]")
        a("v_lshrrev_b32 v1, 6, v0")
        a("v_and_b32 v0, 63, v0")
        xm = o["xcdmap"]
        lg = {1:0,2:1,4:2,8:3,16:4,32:5}[xm]
        a("s_and_b32 s36, s2, 7")
        a("s_lshr_b32 s37, s2, 3")
        if xm <= 4:
            assert xm == 4
            a("s_and_b32 s38, s37, 3")
            a("s_lshl_b32 s36, s36, 2")
            a("s_add_u32 s36, s36, s38")
            a("s_lshr_b32 s37, s37, 2")
        elif xm == 8:
            a("s_and_b32 s38, s37, 7")
            a("s_and_b32 s40, s36, 3")
            a("s_lshl_b32 s40, s40, 3")
            a("s_lshr_b32 s36, s36, 2")
            a("s_lshl_b32 s36, s36, 2")
            a("s_lshr_b32 s37, s37, 3")
            a("s_add_u32 s37, s37, s36")
            a("s_add_u32 s36, s40, s38")
        elif xm == 32:
            a("s_and_b32 s36, s2, 31")
            a("s_lshr_b32 s37, s2, 5")
        a("v_readfirstlane_b32 s39, v1")
        a("s_waitcnt lgkmcnt(0)")
        for base, src, size in ((16, 4, XB), (20, 6, QB), (24, 8, SB), (28, 10, SB), (32, 12, OB)):
            a(f"s_mov_b32 s{base}, s{src}")
            a(f"s_mov_b32 s{base+1}, s{src+1}")
            a(f"s_mov_b32 s{base+2}, {size}")
            a(f"s_mov_b32 s{base+3}, 0x20000")
        if o["reps"] > 1:
            a(f"s_mov_b32 s52, {o['reps']}")
            a("s_mov_b32 s53, s39")
            a("v_mov_b32 v255, v0")
            s.lab("L_rep")
            a("s_mov_b32 s39, s53")
            a("v_mov_b32 v0, v255")
            a("s_barrier")
            if o["stamps"]:
                a("s_memrealtime s[60:61]")
                a("s_memtime s[62:63]")
                a("s_waitcnt lgkmcnt(0)")
        a("s_cmp_ge_u32 s39, 4")
        a("s_cbranch_scc1 L_prod")

    def stamp(s, i):
        if s.o["stamps"]:
            s.a(f"s_memtime s[{64+2*i}:{65+2*i}]") if False else None

    ACC = 128
    XF = (8, 24)
    WF = (40, 68)
    VX = {(0,0):96, (1,0):97, (0,1):98, (1,1):99}
    VW = {(0,0):100, (1,0):101, (0,1):102, (1,1):103}
    def acc(s, j, mt): b = s.ACC + 4*(j*4+mt); return f"v[{b}:{b+3}]"
    def accr(s, j, mt, r): return f"v{s.ACC + 4*(j*4+mt) + r}"

    def c_reads(s, step):
        t, h, b = step // 2, step % 2, step % 2
        xs, ws = t % 4, t % 2
        R = []
        xr = [f"ds_read_b128 v[{s.XF[b]+4*mt}:{s.XF[b]+4*mt+3}], v{s.VX[(h, xs>>1)]} offset:{(xs&1)*32768 + mt*2048}" for mt in range(4)]
        wr = [f"ds_read_b128 v[{s.WF[b]+4*j}:{s.WF[b]+4*j+3}], v{s.VW[(h, j&1)]} offset:{ws*WSLOT + j*2048}" for j in range(7)]
        return [wr[0]] + xr + wr[1:]

    def c_step(s, step, reads):
        a, o = s.a, s.o
        b = step % 2
        ri = 0
        n = 0
        first = step == 0
        for j in range(7):
            for mt in range(4):
                if o["mfma"]:
                    c = "0" if first else s.acc(j, mt)
                    a(f"v_mfma_f32_16x16x32_bf16 {s.acc(j,mt)}, v[{s.WF[b]+4*j}:{s.WF[b]+4*j+3}], v[{s.XF[b]+4*mt}:{s.XF[b]+4*mt+3}], {c}")
                n += 1
                if ri < len(reads) and n >= 2 and (n % o.get("rdgap", 1) == 0):
                    if o["reads"]: a(reads[ri])
                    ri += 1
        while ri < len(reads):
            if o["reads"]: a(reads[ri])
            ri += 1

    def consumer(s):
        a, o = s.a, s.o
        ns = o["nstage"]
        if o["pfx"]:
            a("s_lshl_b32 s40, s37, 8")
            a("s_lshl_b32 s41, s36, 3")
            a("s_add_u32 s40, s40, s41")
            a("s_lshl_b32 s41, s39, 1")
            a("s_add_u32 s40, s40, s41")
            a("s_lshl_b32 s40, s40, 11")
            a("v_lshlrev_b32 v1, 6, v0")
            a("buffer_load_dword v108, v1, s[16:19], s40 offen")
        if o["pfq"] == 1:
            a("v_lshrrev_b32 v1, 3, v0")
            a("v_mul_u32_u24 v1, 14336, v1")
            a("v_and_b32 v2, 7, v0")
            a("v_min_u32 v2, 6, v2")
            a("v_lshl_add_u32 v1, v2, 6, v1")
            a("s_mul_i32 s40, s37, 8*14336")
            a("s_mul_i32 s41, s36, 448")
            a("s_add_u32 s40, s40, s41")
            a("s_mul_i32 s41, s39, 64*14336")
            a("s_add_u32 s40, s40, s41")
            for i in range(4):
                a(f"buffer_load_dword v{109+i}, v1, s[20:23], s40 offen")
                if i < 3: a(f"s_add_u32 s40, s40, {4*64*14336}")
        if o["pfq"] == 2:
            a("v_bfe_u32 v1, v0, 2, 3")
            a("v_mul_u32_u24 v1, 14336, v1")
            a("v_and_b32 v2, 3, v0")
            a("v_lshl_add_u32 v1, v2, 7, v1")
            a("v_lshrrev_b32 v2, 5, v0")
            a("v_mul_u32_u24 v2, 64*14336, v2")
            a("v_add_u32 v1, v1, v2")
            a("s_mul_i32 s40, s37, 8*14336")
            a("s_mul_i32 s41, s36, 448")
            a("s_and_b32 s41, s41, 0xffffff80")
            a("s_add_u32 s40, s40, s41")
            a("s_mul_i32 s41, s39, 2*64*14336")
            a("s_add_u32 s40, s40, s41")
            for i in range(2):
                a(f"buffer_load_dword v{109+i}, v1, s[20:23], s40 offen")
                if i < 1: a(f"s_add_u32 s40, s40, {8*64*14336}")
        if o["prio"]: a("s_setprio 2")
        a("v_and_b32 v1, 15, v0")
        a("v_lshrrev_b32 v2, 4, v0")
        a("v_lshrrev_b32 v3, 1, v1")
        a("v_xor_b32 v3, v2, v3")
        a("v_lshlrev_b32 v3, 4, v3")
        a("v_lshl_add_u32 v3, v1, 7, v3")
        a("s_lshl_b32 s40, s39, 13")
        a(f"v_add_u32 v{s.VX[(0,0)]}, s40, v3")
        a(f"v_xor_b32 v{s.VX[(1,0)]}, 64, v{s.VX[(0,0)]}")
        a(f"v_add_u32 v{s.VX[(0,1)]}, 0x10000, v{s.VX[(0,0)]}")
        a(f"v_add_u32 v{s.VX[(1,1)]}, 0x10000, v{s.VX[(1,0)]}")
        a(f"v_add_u32 v{s.VW[(0,0)]}, {WB}, v3")
        a(f"v_xor_b32 v{s.VW[(1,0)]}, 64, v{s.VW[(0,0)]}")
        a(f"v_xor_b32 v{s.VW[(0,1)]}, 16, v{s.VW[(0,0)]}")
        a(f"v_xor_b32 v{s.VW[(1,1)]}, 16, v{s.VW[(1,0)]}")
        a("s_mul_i32 s41, s39, 15360")
        a("v_mul_u32_u24 v4, 240, v1")
        a("v_add_u32 v4, s41, v4")
        a("v_lshl_add_u32 v104, v2, 4, v4")
        a("v_lshl_add_u32 v105, v2, 3, v4")
        a("v_mul_u32_u24 v5, 37, v0")
        a("v_lshrrev_b32 v5, 9, v5")
        a("v_mul_u32_u24 v6, 14, v5")
        a("v_sub_u32 v6, v0, v6")
        a("v_mul_u32_u24 v7, 240, v5")
        a("v_lshl_add_u32 v7, v6, 4, v7")
        a("v_add_u32 v106, s41, v7")
        a("s_lshl_b32 s42, s37, 8")
        a("s_lshl_b32 s43, s39, 6")
        a("s_add_u32 s42, s42, s43")
        a("s_mul_i32 s42, s42, 7168")
        a("s_mul_i32 s43, s36, 224")
        a("s_add_u32 s42, s42, s43")
        a("v_mul_u32_u24 v7, 7168, v5")
        a("v_lshl_add_u32 v7, v6, 4, v7")
        a("v_add_u32 v107, s42, v7")
        if not (o["reads"]):
            for r in range(8, 96): a(f"v_mov_b32 v{r}, 0")
        a("s_barrier")
        if o["stamps"]: a("s_memtime s[64:65]")
        if o["reads"]:
            for r in s.c_reads(0): a(r)
        a("s_waitcnt lgkmcnt(0)")
        nsteps = 2*ns
        for step in range(nsteps):
            if step % 2 == 1 and step < nsteps - 1:
                a("s_waitcnt lgkmcnt(0)")
                a("s_barrier")
                if o["stamps"]:
                    t = (step+1)//2
                    a(f"s_memtime s[{64+2*t}:{65+2*t}]")
            elif step > 0:
                a("s_waitcnt lgkmcnt(0)")
            reads = s.c_reads(step+1) if step + 1 < nsteps else []
            s.c_step(step, reads)
        if o["stamps"]:
            a("s_memtime s[96:97]")
        s.epilogue()
        if o["reps"] > 1:
            a("s_waitcnt vmcnt(0) lgkmcnt(0)")
            a("s_sub_u32 s52, s52, 1")
            a("s_cmp_lg_u32 s52, 0")
            a("s_cbranch_scc0 L_repdone")
            a("s_branch L_rep")
            s.lab("L_repdone")
        if o["stamps"]: s.write_stamps()
        a("s_endpgm")

    def epilogue(s):
        a, o = s.a, s.o
        if not o["store"]:
            return
        if not o["mfma"]:
            for r in range(128, 240): a(f"v_mov_b32 v{r}, 0")
        a("s_nop 7")
        a("s_nop 1")
        T = 8
        sp = o["stpol"]
        for half in range(2):
            for mt in (2*half, 2*half+1):
                t = T + 16*(mt & 1)
                for u in range(3):
                    d = t + 4*u
                    a(f"v_cvt_pk_bf16_f32 v{d}, {s.accr(2*u,mt,0)}, {s.accr(2*u,mt,1)}")
                    a(f"v_cvt_pk_bf16_f32 v{d+1}, {s.accr(2*u,mt,2)}, {s.accr(2*u,mt,3)}")
                    a(f"v_cvt_pk_bf16_f32 v{d+2}, {s.accr(2*u+1,mt,0)}, {s.accr(2*u+1,mt,1)}")
                    a(f"v_cvt_pk_bf16_f32 v{d+3}, {s.accr(2*u+1,mt,2)}, {s.accr(2*u+1,mt,3)}")
                    a(f"ds_write_b128 v104, v[{d}:{d+3}] offset:{mt*3840 + u*64}")
                d = t + 12
                a(f"v_cvt_pk_bf16_f32 v{d}, {s.accr(6,mt,0)}, {s.accr(6,mt,1)}")
                a(f"v_cvt_pk_bf16_f32 v{d+1}, {s.accr(6,mt,2)}, {s.accr(6,mt,3)}")
                a(f"ds_write_b64 v105, v[{d}:{d+1}] offset:{mt*3840 + 192}")
            a("s_waitcnt lgkmcnt(0)")
            a("s_mov_b32 exec_hi, 0x00ffffff")
            R = 40 + 32*half
            for i in range(8):
                ii = half*8 + i
                a(f"ds_read_b128 v[{R+4*i}:{R+4*i+3}], v106 offset:{960*ii}")
            for i in range(8):
                ii = half*8 + i
                a(f"s_mov_b32 s44, {28672*ii}")
                a(f"s_waitcnt lgkmcnt({7-i})")
                a(f"buffer_store_dwordx4 v[{R+4*i}:{R+4*i+3}], v107, s[32:35], s44 offen {sp}")
            a("s_mov_b64 exec, -1")

    def write_stamps(s):
        o = s.o
        a = s.a
        a("s_waitcnt vmcnt(0)")
        a("s_memtime s[98:99]")
        a("s_memrealtime s[100:101]")
        a("s_waitcnt lgkmcnt(0)")
        a("s_cmp_lg_u32 s39, 0")
        a("s_cbranch_scc1 L_nostamp")
        a("s_mov_b32 s16, s14")
        a("s_mov_b32 s17, s15")
        a("s_mov_b32 s18, %d" % (256 if o["dbg"] else 0x100000))
        a("s_mov_b32 s19, 0x20000")
        if o["dbg"]:
            a("s_mov_b64 exec, 1")
            a("v_mov_b32 v1, 0")
            a("s_not_b32 s45, s60")
            a("v_mov_b32 v2, s45")
            a("buffer_atomic_umax v2, v1, s[16:19], 0 offen")
            a("v_mov_b32 v3, s100")
            a("buffer_atomic_umax v3, v1, s[16:19], 0 offen offset:4")
            a("s_sub_u32 s45, s64, s62")
            a("v_mov_b32 v4, s45")
            a("buffer_atomic_umax v4, v1, s[16:19], 0 offen offset:8")
            a("s_sub_u32 s45, s96, s64")
            a("v_mov_b32 v5, s45")
            a("buffer_atomic_umax v5, v1, s[16:19], 0 offen offset:12")
            a("s_sub_u32 s45, s98, s96")
            a("v_mov_b32 v6, s45")
            a("buffer_atomic_umax v6, v1, s[16:19], 0 offen offset:16")
            a("s_sub_u32 s45, s98, s62")
            a("v_mov_b32 v7, s45")
            a("buffer_atomic_umax v7, v1, s[16:19], 0 offen offset:20")
            a("s_sub_u32 s45, s100, s60")
            a("v_mov_b32 v8, s45")
            a("buffer_atomic_umax v8, v1, s[16:19], 0 offen offset:24")
            a("s_waitcnt vmcnt(0)")
            a("s_endpgm")
        a("s_lshl_b32 s45, s2, 8")
        a("v_mov_b32 v1, s45")
        vals = [60, 62] + [64+2*t for t in range(16)] + [96, 98, 100]
        for i, r in enumerate(vals):
            a(f"v_mov_b32 v2, s{r}")
            a(f"buffer_store_dword v2, v1, s[16:19], 0 offen offset:{4*i}")
        a("s_getreg_b32 s45, hwreg(HW_REG_XCC_ID)")
        a("v_mov_b32 v2, s45")
        a(f"buffer_store_dword v2, v1, s[16:19], 0 offen offset:{4*len(vals)}")
        a("s_waitcnt vmcnt(0)")
        s.lab("L_nostamp")

    PX = 8
    PQ = 16
    PS = 24
    PWA, PWB = 25, 26
    SF = 28
    ZT = 36
    PK = 40
    TT = 56
    QS = (64, 96, 128)
    SS = (160, 164, 168)

    def p_xload(s, t):
        a, o = s.a, s.o
        if not o["xload"]: return
        slot = t % 4
        if o["fixx"]: a(f"s_movk_i32 s46, {(t % o['fixx'])*128}")
        elif o["xlin"]: a(f"s_mov_b32 s46, {t*262144}")
        elif o["xrot"]:
            a(f"s_add_u32 s46, s54, {t*128}")
            a(f"s_and_b32 s46, s46, 2047")
        else: a(f"s_movk_i32 s46, {t*128}")
        for i in range(8):
            if i % 4 == 0:
                a(f"s_add_u32 m0, s47, {slot*32768 + (i>>2)*4096}")
                a("s_nop 0")
            s.vmop(f"buffer_load_dwordx4 v{s.PX+i}, s[16:19], s46 offen offset:{(i&3)*1024} lds {o['xpol']}", ("x", t))

    def p_qload(s, t, i):
        o = s.o
        if not o["qload"]: return
        r = s.QS[t % 3] + 4*i
        s.vmop(f"buffer_load_dwordx4 v[{r}:{r+3}], v{s.PQ+i}, s[20:23], s48 offen {o['qpol']}", ("q", t, i))
    def p_qsoff(s, t):
        if s.o["fixq"]: t = t % s.o["fixq"]
        s.a(f"s_mov_b32 s48, {t*64*14336 if not s.o['qlin'] else t*32*64*448}")
    def p_sload(s, t):
        o = s.o
        if not o["sload"]: return
        r = s.SS[t % 3]
        s.a(f"s_movk_i32 s49, {t*7168}") if t*7168 < 32768 else s.a(f"s_mov_b32 s49, {t*7168}")
        s.vmop(f"buffer_load_dwordx2 v[{r}:{r+1}], v{s.PS}, s[24:27], s49 offen", ("s", t))
        s.vmop(f"buffer_load_dwordx2 v[{r+2}:{r+3}], v{s.PS}, s[28:31], s49 offen", ("s", t))
    def mask(s, on):
        if s.o["qmask"]:
            s.a("s_mov_b64 exec, s[50:51]" if on else "s_mov_b64 exec, -1")

    def p_deq(s, t, tn):
        a, o = s.a, s.o
        sl = s.SS[t % 3]
        q = s.QS[t % 3]
        s.vmwait(("s", t))
        if o["deq"]:
            a(f"v_lshlrev_b32 v{s.SF}, 16, v{sl}")
            a(f"v_and_b32 v{s.SF+1}, 0xffff0000, v{sl}")
            a(f"v_lshlrev_b32 v{s.SF+2}, 16, v{sl+1}")
            a(f"v_and_b32 v{s.SF+3}, 0xffff0000, v{sl+1}")
            a(f"v_lshlrev_b32 v{s.ZT}, 16, v{sl+2}")
            a(f"v_and_b32 v{s.ZT+1}, 0xffff0000, v{sl+2}")
            a(f"v_lshlrev_b32 v{s.ZT+2}, 16, v{sl+3}")
            a(f"v_and_b32 v{s.ZT+3}, 0xffff0000, v{sl+3}")
            for e in range(4):
                a(f"v_mul_f32_e64 v{s.SF+4+e}, -v{s.ZT+e}, v{s.SF+e}")
            if o["deqmode"] == "mix":
                for e in range(4):
                    a(f"v_mul_f32 v{s.SF+e}, 0x4b800000, v{s.SF+e}")
        if tn is not None:
            s.p_sload(tn)
            s.p_qsoff(tn)
        for ip in range(4):
            s.vmwait(("q", t, 2*ip+1))
            if o["deq"]:
                r0, r1 = q + 8*ip, q + 8*ip + 4
                T = s.TT
                if o["deqmode"] == "fma":
                    for e in range(4):
                        a(f"v_cvt_f32_i32 v{T+2*e}, v{r0+e}")
                        a(f"v_cvt_f32_i32 v{T+2*e+1}, v{r1+e}")
                    for e in range(4):
                        a(f"v_fma_f32 v{T+2*e}, v{T+2*e}, v{s.SF+e}, v{s.SF+4+e}")
                        a(f"v_fma_f32 v{T+2*e+1}, v{T+2*e+1}, v{s.SF+e}, v{s.SF+4+e}")
                elif o["deqmode"] == "pk":
                    for e in range(4):
                        a(f"v_cvt_f32_i32 v{T+2*e}, v{r0+e}")
                        a(f"v_cvt_f32_i32 v{T+2*e+1}, v{r1+e}")
                    for e in range(4):
                        se, ce = s.SF+e, s.SF+4+e
                        sb, cb = se & ~1, ce & ~1
                        a(f"v_pk_fma_f32 v[{T+2*e}:{T+2*e+1}], v[{T+2*e}:{T+2*e+1}], v[{sb}:{sb+1}], v[{cb}:{cb+1}] op_sel:[0,{se&1},{ce&1}] op_sel_hi:[1,{se&1},{ce&1}]")
                elif o["deqmode"] == "mix":
                    for e in range(4):
                        a(f"v_fma_mix_f32 v{T+2*e}, v{r0+e}, v{s.SF+e}, v{s.SF+4+e} op_sel_hi:[1,0,0]")
                        a(f"v_fma_mix_f32 v{T+2*e+1}, v{r1+e}, v{s.SF+e}, v{s.SF+4+e} op_sel_hi:[1,0,0]")
                for e in range(4):
                    a(f"v_cvt_pk_bf16_f32 v{s.PK+4*e+ip}, v{T+2*e}, v{T+2*e+1}")
            if tn is not None:
                s.p_qload(tn, 2*ip); s.p_qload(tn, 2*ip+1)
        if o["wwrite"]:
            ws = (t % 2) * WSLOT
            for e in range(4):
                ad = s.PWA if e < 2 else s.PWB
                a(f"ds_write_b128 v{ad}, v[{s.PK+4*e}:{s.PK+4*e+3}] offset:{ws + (e&1)*128}")

    def producer(s):
        a, o = s.a, s.o
        ns = o["nstage"]
        s.lab("L_prod")
        a("s_sub_u32 s39, s39, 4")
        a("v_and_b32 v1, 31, v0")
        a("v_lshrrev_b32 v2, 5, v0")
        a("s_lshl_b32 s40, s39, 1")
        a("v_add_u32 v2, s40, v2")
        a("s_mov_b32 s41, %d" % (8*512 if o["qlin"] else 114688))
        a("v_mul_lo_u32 v3, v2, s41")
        a("v_lshl_add_u32 v3, v1, 4, v3")
        a("s_mul_i32 s42, s36, %d" % (64*512 if o["qlin"] == 1 else 64*448 if o["qlin"] else 448))
        a(f"v_add_u32 v{s.PQ}, s42, v3")
        for i in range(1, 8):
            a(f"v_add_u32 v{s.PQ+i}, {(512 if o['qlin'] else 14336)*i}, v{s.PQ}")
        a("s_mul_i32 s42, s36, 224")
        a("v_lshlrev_b32 v3, 3, v1")
        a(f"v_add_u32 v{s.PS}, s42, v3")
        a("s_mov_b32 s50, 0x0fffffff")
        a("s_mov_b32 s51, 0x0fffffff")
        s.mask(1)
        s.p_sload(0); s.p_qsoff(0)
        for i in range(8): s.p_qload(0, i)
        s.mask(0)
        a("v_lshrrev_b32 v3, 3, v0")
        a("s_lshl_b32 s42, s37, 8")
        a("s_lshl_b32 s43, s39, 6")
        a("s_add_u32 s42, s42, s43")
        a("v_add_u32 v3, s42, v3")
        a("v_lshlrev_b32 v3, %d, v3" % (7 if o["xlin"] else 11))
        if o["xrot"]:
            a(f"s_mul_i32 s54, s37, {128*o['xrot']}")
        a("v_and_b32 v4, 7, v0")
        a("v_lshrrev_b32 v5, 4, v0")
        a("v_xor_b32 v4, v4, v5")
        a(f"v_lshl_add_u32 v{s.PX}, v4, 4, v3")
        a(f"v_xor_b32 v4, 64, v{s.PX}")
        for i in range(1, 8):
            src = f"v4" if i & 1 else f"v{s.PX}"
            st = 1024 if o["xlin"] else 16384
            a(f"v_add_u32 v{s.PX+i}, {i*st - (i&3)*1024}, {src}")
        a("s_lshl_b32 s47, s39, 13")
        s.p_xload(0)
        s.mask(1)
        s.p_sload(1); s.p_qsoff(1)
        for i in range(8): s.p_qload(1, i)
        s.mask(0)
        s.p_xload(1)
        s.mask(1)
        s.p_sload(2); s.p_qsoff(2)
        for i in range(8): s.p_qload(2, i)
        s.mask(0)
        a("v_lshrrev_b32 v3, 3, v1")
        a("v_lshlrev_b32 v3, 5, v3")
        a("v_and_b32 v4, 1, v1")
        a("v_lshl_add_u32 v3, v4, 4, v3")
        a("v_bfe_u32 v4, v1, 1, 2")
        a("v_lshl_add_u32 v3, v4, 2, v3")
        a("v_lshlrev_b32 v4, 2, v1")
        a("v_cmp_le_u32 vcc, 24, v1")
        a("s_nop 1")
        a("v_cndmask_b32 v3, v3, v4, vcc")
        a("v_bfe_u32 v4, v3, 1, 3")
        a("v_bfe_u32 v5, v3, 4, 1")
        a("v_xor_b32 v4, v4, v5")
        a("v_xor_b32 v4, v4, v2")
        a("v_lshlrev_b32 v3, 7, v3")
        a("v_lshl_add_u32 v3, v4, 4, v3")
        a(f"v_add_u32 v{s.PWA}, {WB}, v3")
        a(f"v_add_u32 v3, {WB+256}, v3")
        a(f"v_xor_b32 v{s.PWB}, 16, v3")
        if not o["deq"]:
            for r in range(s.PK, s.PK+16): a(f"v_mov_b32 v{r}, 0")
        for t in range(-1, ns-1):
            if t + 3 < ns: s.p_xload(t+3)
            s.mask(1)
            s.p_deq(t+1, t+4 if t+4 < ns else None)
            s.mask(0)
            s.vmwait(("x", t+1))
            a("s_waitcnt lgkmcnt(0)")
            a("s_barrier")
        if o["reps"] > 1:
            a("s_waitcnt vmcnt(0) lgkmcnt(0)")
            a("s_sub_u32 s52, s52, 1")
            a("s_cmp_lg_u32 s52, 0")
            a("s_cbranch_scc0 L_repdone2")
            a("s_branch L_rep")
            s.lab("L_repdone2")
        a("s_endpgm")

    def build(s):
        s.setup()
        s.consumer()
        s.producer()
        s.lab("L_end")
        s.a("s_endpgm")
        hdr = open("cdna_kernels/%s.s.ref" % NAME).read().split("; Override launch")[0]
        out = hdr + f"; @launch grid=(256,1,1) block=(512,1,1) lds={LDS}\n"
        out += f'.amdgcn_target "amdgcn-amd-amdhsa--gfx950"\n.text\n.globl {NAME}_kernel\n.p2align 8\n.type {NAME}_kernel,@function\n{NAME}_kernel:\n'
        out += "\n".join(s.L) + "\n"
        out += f""".section .rodata,"a"
.p2align 6
.amdhsa_kernel {NAME}_kernel
  .amdhsa_next_free_vgpr 256
  .amdhsa_next_free_sgpr 102
  .amdhsa_accum_offset 256
  .amdhsa_group_segment_fixed_size 0
  .amdhsa_kernarg_size 56
  .amdhsa_user_sgpr_count 2
  .amdhsa_user_sgpr_kernarg_segment_ptr 1
  .amdhsa_system_sgpr_workgroup_id_x 1
  .amdhsa_float_denorm_mode_32 3
.end_amdhsa_kernel
"""
        return out

if __name__ == "__main__":
    out = sys.argv[1]
    kw = {}
    for x in sys.argv[2:]:
        k, v = x.split("=")
        kw[k] = int(v) if v.lstrip("-").isdigit() else v.replace("_", " ") if k.endswith("pol") else v
    open(out, "w").write(Gen(**kw).build())
```

```python
import sys

NAME = "standalone__weight_only_int_quip_2__prompt"
M, K, N = 2048, 1024, 3584
XB, QB, SB, OB = M*K*2, K*N*4, 16*N*2, M*N*2
NXS = 3
WB = NXS*32768
WSLOT = 14336
TB = WB + 2*WSLOT
TC = TB + 16*448
LDS = TC + 16*448
STG = 32768
NS = 16

DEF = dict(
    mfma=1, deq=1, store=1, xload=1, qload=1, reads=1, wwrite=1,
    stamps=0, dbg=0, prio=0, pprio=0, xcdmap=4, deqmode="fma",
    stpol="", xpol="", qpol="", tqpol="nt", txpol="",
    reps=1, fixx=0, fixq=0,
    tx=1,
    tq=1,
    tqd=0,
    epi=1,
    pro=2,
    lq=3,
    tw="p",
    xpos=1,
    xgap=3,
    xsplit=0,
)

class Ctr:
    def __init__(s, g, name, mx): s.g, s.name, s.mx, s.q = g, name, mx, []
    def op(s, text, tag): s.g.a(text); s.q.append(tag)
    def wait(s, tag):
        idx = [i for i, t in enumerate(s.q) if t == tag]
        if not idx: return
        n = len(s.q) - 1 - idx[-1]
        if n > s.mx: n = s.mx
        s.g.a(f"s_waitcnt {s.name}({n})")
        s.q = s.q[len(s.q)-n:] if n else []
    def all(s):
        s.g.a(f"s_waitcnt {s.name}(0)"); s.q = []

class WCtr:
    def __init__(s, g, name, mx): s.g, s.name, s.mx = g, name, mx; s.q = [[] for _ in range(4)]; s.cur = (0,1,2,3)
    def op(s, text, tag):
        s.g.a(text)
        for w in s.cur: s.q[w].append(tag)
    def wait(s, tag):
        ns = []
        for w in s.cur:
            idx = [i for i, t in enumerate(s.q[w]) if t == tag]
            if idx: ns.append(len(s.q[w]) - 1 - idx[-1])
        if not ns: return
        n = min(min(ns), s.mx)
        s.g.a(f"s_waitcnt {s.name}({n})")
        for w in s.cur: s.q[w] = s.q[w][len(s.q[w])-n:] if n else []
    def all(s):
        s.g.a(f"s_waitcnt {s.name}(0)")
        for w in s.cur: s.q[w] = []

class Gen:
    def __init__(s, **kw):
        s.o = dict(DEF)
        for k in kw: assert k in DEF, k
        s.o.update(kw)
        s.L = []
        s.nlab = 0
    def a(s, t): s.L.append("    " + t)
    def lab(s, t): s.L.append(t + ":")
    def newlab(s): s.nlab += 1; return f"L_{s.nlab}"

    def setup(s):
        a, o = s.a, s.o
        a("s_cmp_ge_u32 s2, 256")
        a("s_cbranch_scc1 L_end")
        a("s_load_dwordx8 s[4:11], s[0:1], 0")
        a("s_load_dwordx2 s[12:13], s[0:1], 32")
        if o["stamps"]:
            a("s_load_dwordx2 s[14:15], s[0:1], %d" % (40 if o["dbg"] else 48))
            a("s_memrealtime s[60:61]")
            a("s_memtime s[62:63]")
        a("v_lshrrev_b32 v1, 6, v0")
        a("v_and_b32 v0, 63, v0")
        xm = o["xcdmap"]
        a("s_and_b32 s36, s2, 7")
        a("s_lshr_b32 s37, s2, 3")
        if xm == 4:
            a("s_and_b32 s38, s37, 3")
            a("s_lshl_b32 s36, s36, 2")
            a("s_add_u32 s36, s36, s38")
            a("s_lshr_b32 s37, s37, 2")
        elif xm == 8:
            a("s_and_b32 s38, s37, 7")
            a("s_and_b32 s40, s36, 3")
            a("s_lshl_b32 s40, s40, 3")
            a("s_lshr_b32 s36, s36, 2")
            a("s_lshl_b32 s36, s36, 2")
            a("s_lshr_b32 s37, s37, 3")
            a("s_add_u32 s37, s37, s36")
            a("s_add_u32 s36, s40, s38")
        a("v_readfirstlane_b32 s39, v1")
        a("s_waitcnt lgkmcnt(0)")
        for base, src, size in ((16, 4, XB), (20, 6, QB), (32, 12, OB)):
            a(f"s_mov_b32 s{base}, s{src}")
            a(f"s_mov_b32 s{base+1}, s{src+1}")
            a(f"s_mov_b32 s{base+2}, {size}")
            a(f"s_mov_b32 s{base+3}, 0x20000")
        if o["reps"] > 1:
            a(f"s_mov_b32 s52, {o['reps']}")
            a("s_mov_b32 s53, s39")
            s.lab("L_rep")
            a("s_mov_b32 s39, s53")
            a("v_mbcnt_lo_u32_b32 v0, -1, 0")
            a("v_mbcnt_hi_u32_b32 v0, -1, v0")
            a("s_barrier")
            if o["stamps"]:
                a("s_memrealtime s[60:61]")
                a("s_memtime s[62:63]")
                a("s_waitcnt lgkmcnt(0)")
        a("s_cmp_ge_u32 s39, 4")
        a("s_cbranch_scc1 L_prod")

    def rep_tail(s, lab):
        a, o = s.a, s.o
        if o["reps"] > 1:
            a("s_waitcnt vmcnt(0) lgkmcnt(0)")
            a("s_sub_u32 s52, s52, 1")
            a("s_cmp_lg_u32 s52, 0")
            a(f"s_cbranch_scc0 {lab}")
            a("s_branch L_rep")
            s.lab(lab)

    ACC = 128
    XF = (8, 24)
    WF = (40, 68)
    VX = {(0,0):96, (1,0):97, (0,1):98, (1,1):99}
    CX = 112
    VW = {(0,0):100, (1,0):101, (0,1):102, (1,1):103}
    V_SW, V_SW6, V_RB, V_GO = 104, 105, 106, 107
    V_TT, V_TQ, V_TX, V_TD = 108, 109, 110, 111
    RB = (112, 240)
    CT = (8, 40)
    def acc(s, j, mt): b = s.ACC + 4*(j*4+mt); return f"v[{b}:{b+3}]"
    def accr(s, j, mt, r): return f"v{s.ACC + 4*(j*4+mt) + r}"

    def c_reads(s, step):
        t, h, b = step // 2, step % 2, step % 2
        xs, ws = t % NXS, t % 2
        xr = [f"ds_read_b128 v[{s.XF[b]+4*mt}:{s.XF[b]+4*mt+3}], v{s.VX[(h, xs>>1)]} offset:{(xs&1)*32768 + mt*2048}" for mt in range(4)]
        wr = [f"ds_read_b128 v[{s.WF[b]+4*j}:{s.WF[b]+4*j+3}], v{s.VW[(h, j&1)]} offset:{ws*WSLOT + j*2048}" for j in range(7)]
        return [wr[0]] + xr + wr[1:]

    def mfma(s, step, j, mt):
        if not s.o["mfma"]: return
        b = step % 2
        c = "0" if step == 0 else s.acc(j, mt)
        s.a(f"v_mfma_f32_16x16x32_bf16 {s.acc(j,mt)}, v[{s.WF[b]+4*j}:{s.WF[b]+4*j+3}], v[{s.XF[b]+4*mt}:{s.XF[b]+4*mt+3}], {c}")

    def c_step(s, step, reads, extra=None):
        ri, n = 0, 0
        for j in range(7):
            for mt in range(4):
                s.mfma(step, j, mt)
                n += 1
                if ri < len(reads) and n >= 2:
                    if s.o["reads"]: s.lg.op(reads[ri], "r")
                    ri += 1
                if extra and n in extra: extra[n]()

    def only_wave(s, w, fn, cmp="s_cmp_lg_u32"):
        lab = s.newlab()
        s.a(f"{cmp} s39, {w}")
        s.a(f"s_cbranch_scc1 {lab}")
        old = s.vm.cur
        s.vm.cur = {"s_cmp_lg_u32": (w,), "s_cmp_ge_u32": tuple(range(w)), "s_cmp_lt_u32": tuple(range(w, 4))}[cmp]
        fn()
        s.vm.cur = old
        s.lab(lab)

    def touch_q(s, st):
        s.a(f"s_add_u32 s44, s57, {st*64*14336}")
        s.vm.op(f"buffer_load_dword v{s.V_TD}, v{s.V_TQ}, s[20:23], s44 offen {s.o['tqpol']}", "t")
    def touch_x(s, half):
        s.a(f"s_add_u32 s44, s58, {half*1024}")
        s.vm.op(f"buffer_load_dword v{s.V_TD}, v{s.V_TX}, s[16:19], s44 offen {s.o['txpol']}", "t")

    def xdma_ops(s, t):
        o = s.o
        if not o["xload"] or t >= NS: return []
        slot = t % NXS
        kk = (t % o["fixx"]) if o["fixx"] else t
        ops = []
        for i in range(8):
            def f(i=i):
                if i == 0: s.a(f"s_movk_i32 s46, {kk*128}")
                s.vm.op(f"buffer_load_dwordx4 v{s.CX+i}, s[16:19], s46 offen offset:{(i&3)*1024} {o['xpol']} lds", ("x", t))
            def g(i=i):
                s.a(f"s_add_u32 m0, s47, {slot*32768 + (i>>2)*4096}")
            ops.append((g if i % 4 == 0 else None, f))
        return ops

    def touch_addr_q(s, vt):
        a = s.a
        a("v_bfe_u32 v4, v0, 2, 3")
        a("v_mul_u32_u24 v4, 14336, v4")
        a("v_and_b32 v5, 3, v0")
        a("v_lshl_add_u32 v4, v5, 7, v4")
        a("v_lshrrev_b32 v5, 5, v0")
        a("v_mul_u32_u24 v5, 64*14336, v5")
        a(f"v_add_u32 v{vt}, v4, v5")
        a("s_mul_i32 s57, s37, 8*14336")
        a("s_mul_i32 s41, s36, 448")
        a("s_and_b32 s41, s41, 0xffffff80")
        a("s_add_u32 s57, s57, s41")

    def roll_sched(s):
        o = s.o
        if o["tq"] != 1: return []
        first = o["lq"] + 4 if o["lq"] % 2 == 0 else o["lq"] + 3
        return [(k*2 + 1 + o["tqd"], st, k & 3) for k, st in enumerate(range(first, NS, 2))]

    def consumer(s):
        a, o = s.a, s.o
        s.vm = WCtr(s, "vmcnt", 63); s.lg = Ctr(s, "lgkmcnt", 15)
        a("v_lshrrev_b32 v3, 3, v0")
        a("s_lshl_b32 s42, s37, 8")
        a("s_lshl_b32 s43, s39, 6")
        a("s_add_u32 s42, s42, s43")
        a("v_add_u32 v3, s42, v3")
        a("v_lshlrev_b32 v3, 11, v3")
        a("v_and_b32 v4, 7, v0")
        a("v_lshrrev_b32 v5, 4, v0")
        a("v_xor_b32 v4, v4, v5")
        a(f"v_lshl_add_u32 v{s.CX}, v4, 4, v3")
        a(f"v_xor_b32 v4, 64, v{s.CX}")
        a("s_lshl_b32 s47, s39, 13")
        a("s_mov_b32 s24, s8"); a("s_mov_b32 s25, s9"); a(f"s_mov_b32 s26, {SB}"); a("s_mov_b32 s27, 0x20000")
        a("s_mov_b32 s28, s10"); a("s_mov_b32 s29, s11"); a(f"s_mov_b32 s30, {SB}"); a("s_mov_b32 s31, 0x20000")
        a("v_and_b32 v1, 31, v0")
        a("v_min_u32 v1, 27, v1")
        a("v_lshrrev_b32 v2, 5, v0")
        a("v_mul_u32_u24 v5, 7168, v2")
        a("v_lshl_add_u32 v5, v1, 3, v5")
        a("s_mul_i32 s40, s39, 4*7168")
        a("s_mul_i32 s41, s36, 224")
        a("s_add_u32 s40, s40, s41")
        a("s_add_u32 s41, s40, 2*7168")
        s.vm.op("buffer_load_dwordx2 v[8:9], v5, s[24:27], s40 offen", "tab")
        s.vm.op("buffer_load_dwordx2 v[10:11], v5, s[28:31], s40 offen", "tab")
        s.vm.op("buffer_load_dwordx2 v[12:13], v5, s[24:27], s41 offen", "tab")
        s.vm.op("buffer_load_dwordx2 v[14:15], v5, s[28:31], s41 offen", "tab")
        x0 = s.xdma_ops(0)
        for i in range(8):
            if i:
                src = "v4" if i & 1 else f"v{s.CX}"
                a(f"v_add_u32 v{s.CX+i}, {i*16384 - (i&3)*1024}, {src}")
            if x0:
                if x0[i][0]: x0[i][0](); a("s_nop 0")
                x0[i][1]()
        a("v_mul_u32_u24 v6, 448, v2")
        a("v_lshl_add_u32 v6, v1, 4, v6")
        a("s_mul_i32 s40, s39, 4*448")
        a(f"s_add_u32 s40, s40, {TB}")
        a("v_add_u32 v6, s40, v6")
        if o["tx"]:
            a("v_lshrrev_b32 v1, 3, v0")
            a("v_lshlrev_b32 v1, 11, v1")
            a("v_and_b32 v2, 7, v0")
            a(f"v_lshl_add_u32 v{s.V_TX}, v2, 7, v1")
            a("s_lshl_b32 s40, s37, 8")
            a("s_lshl_b32 s41, s36, 3")
            a("s_add_u32 s40, s40, s41")
            a("s_lshl_b32 s58, s40, 11")
            s.only_wave(0, lambda: s.touch_x(0))
            if o["tx"] == 1: s.only_wave(3, lambda: s.touch_x(1))
        if o["tq"]:
            s.touch_addr_q(s.V_TQ)
            f0 = o["lq"] if o["lq"] % 2 == 0 else o["lq"] - 1
            s.only_wave(1, lambda: s.touch_q(f0))
            s.only_wave(2, lambda: s.touch_q(f0+2))
            if o["tq"] == 2:
                for k, st in enumerate(range(f0+4, NS, 2)):
                    s.only_wave((1, 2, 0, 3)[k & 3], lambda: s.touch_q(st))
        for g, f in s.xdma_ops(1):
            if g: g(); a("s_nop 0")
            f()
        if o["prio"]: a(f"s_setprio {o['prio']}")
        a("v_and_b32 v1, 15, v0")
        a("v_lshrrev_b32 v2, 4, v0")
        a("v_lshrrev_b32 v3, 1, v1")
        a("v_xor_b32 v3, v2, v3")
        a("v_lshlrev_b32 v3, 4, v3")
        a("v_lshl_add_u32 v3, v1, 7, v3")
        a("s_lshl_b32 s40, s39, 13")
        a(f"v_add_u32 v{s.VX[(0,0)]}, s40, v3")
        a(f"v_xor_b32 v{s.VX[(1,0)]}, 64, v{s.VX[(0,0)]}")
        a(f"v_add_u32 v{s.VX[(0,1)]}, 0x10000, v{s.VX[(0,0)]}")
        a(f"v_add_u32 v{s.VX[(1,1)]}, 0x10000, v{s.VX[(1,0)]}")
        a(f"v_add_u32 v{s.VW[(0,0)]}, {WB}, v3")
        a(f"v_xor_b32 v{s.VW[(1,0)]}, 64, v{s.VW[(0,0)]}")
        a(f"v_xor_b32 v{s.VW[(0,1)]}, 16, v{s.VW[(0,0)]}")
        a(f"v_xor_b32 v{s.VW[(1,1)]}, 16, v{s.VW[(1,0)]}")
        a("s_mul_i32 s41, s39, 15360")
        a(f"s_add_u32 s41, s41, {STG}")
        a("v_mul_u32_u24 v4, 240, v1")
        a("v_add_u32 v4, s41, v4")
        a(f"v_lshl_add_u32 v{s.V_SW}, v2, 4, v4")
        a(f"v_lshl_add_u32 v{s.V_SW6}, v2, 3, v4")
        a("v_min_u32 v4, 55, v0")
        a("v_mul_u32_u24 v5, 37, v4")
        a("v_lshrrev_b32 v5, 9, v5")
        a("v_mul_u32_u24 v3, 14, v5")
        a("v_sub_u32 v3, v4, v3")
        a("v_mul_u32_u24 v7, 240, v5")
        a("v_lshl_add_u32 v7, v3, 4, v7")
        a(f"v_add_u32 v{s.V_RB}, s41, v7")
        a("s_lshl_b32 s42, s37, 8")
        a("s_lshl_b32 s43, s39, 6")
        a("s_add_u32 s42, s42, s43")
        a("s_mul_i32 s42, s42, 7168")
        a("s_mul_i32 s43, s36, 224")
        a("s_add_u32 s42, s42, s43")
        a("v_mul_u32_u24 v7, 7168, v5")
        a("v_lshl_add_u32 v7, v3, 4, v7")
        a(f"v_add_u32 v{s.V_GO}, s42, v7")
        s.vm.wait("tab")
        for hb in range(2):
            r = 8 + 4*hb
            S, Z = 16 + 8*hb, 32
            a(f"v_lshlrev_b32 v{S}, 16, v{r}"); a(f"v_and_b32 v{S+1}, 0xffff0000, v{r}")
            a(f"v_lshlrev_b32 v{S+2}, 16, v{r+1}"); a(f"v_and_b32 v{S+3}, 0xffff0000, v{r+1}")
            a(f"v_lshlrev_b32 v{Z}, 16, v{r+2}"); a(f"v_and_b32 v{Z+1}, 0xffff0000, v{r+2}")
            a(f"v_lshlrev_b32 v{Z+2}, 16, v{r+3}"); a(f"v_and_b32 v{Z+3}, 0xffff0000, v{r+3}")
            for e in range(4): a(f"v_mul_f32_e64 v{S+4+e}, -v{Z+e}, v{S+e}")
            if o["deqmode"] == "mix":
                for e in range(4): a(f"v_mul_f32 v{S+e}, 0x4b800000, v{S+e}")
            s.lg.op(f"ds_write_b128 v6, v[{S}:{S+3}] offset:{hb*896}", "tw")
            s.lg.op(f"ds_write_b128 v6, v[{S+4}:{S+7}] offset:{hb*896 + 16*448}", "tw")
        s.lg.all()
        a("s_barrier")
        if not o["reads"]:
            for r in range(8, 96): a(f"v_mov_b32 v{r}, 0")
        s.vm.wait(("x", 0))
        a("s_barrier")
        if o["stamps"]: a("s_memtime s[64:65]")
        if o["reads"]:
            for r in s.c_reads(0): s.lg.op(r, "r")
        nsteps = 2*NS
        ex = {}
        def add(step, n, fn):
            d = ex.setdefault(step, {})
            old = d.get(n)
            d[n] = fn if old is None else (lambda old=old, fn=fn: (old(), fn()))
        for t in range(NS):
            ops = s.xdma_ops(t+2)
            for i, (g, f) in enumerate(ops):
                if t == 0: st, n = 0, o["xpos"] + 1 + i*o["xgap"]
                elif o["xsplit"]: st, n = 2*t - 1 + i // 4, o["xpos"] + 1 + (i % 4)*o["xgap"]*2
                else: st, n = 2*t - 1, o["xpos"] + 1 + i*o["xgap"]
                assert n <= 28
                if g: add(st, n - 1, g)
                add(st, n, f)
        if o["tw"] == "c":
            for P, stg, wv in s.roll_sched():
                add(2*P - 1, 28, (lambda stg=stg, wv=wv: s.only_wave(wv, lambda: s.touch_q(stg))))
        if o["tx"] == 2:
            add(1, 28, lambda: s.only_wave(3, lambda: s.touch_x(1)))
        for step in range(nsteps):
            if step % 2 == 1 and step < nsteps - 1:
                t = (step+1)//2
                s.lg.all()
                s.vm.wait(("x", t))
                a("s_barrier")
                if o["stamps"]: a(f"s_memtime s[{64+2*t}:{65+2*t}]")
            else:
                s.lg.all()
            if step == nsteps - 1 and o["epi"] and o["store"]:
                s.last_step(step)
            else:
                reads = s.c_reads(step+1) if step + 1 < nsteps else []
                s.c_step(step, reads, ex.get(step))
        if o["stamps"]: a("s_memtime s[96:97]")
        if not (o["epi"] and o["store"]): s.epilogue_simple()
        s.rep_tail("L_repdone")
        if o["stamps"]: s.write_stamps()
        a("s_endpgm")

    def cvt_ops(s, mt):
        t = s.CT[mt & 1]
        ops = []
        for u in range(3):
            d = t + 4*u
            for q, (jj, r) in enumerate(((0,0),(0,2),(1,0),(1,2))):
                ops.append(lambda d=d, q=q, jj=jj, r=r, u=u: s.a(f"v_cvt_pk_bf16_f32 v{d+q}, {s.accr(2*u+jj,mt,r)}, {s.accr(2*u+jj,mt,r+1)}"))
            ops.append(lambda d=d, u=u: s.lg.op(f"ds_write_b128 v{s.V_SW}, v[{d}:{d+3}] offset:{mt*3840 + u*64}", ("w", mt)))
        d = t + 12
        ops.append(lambda: s.a(f"v_cvt_pk_bf16_f32 v{d}, {s.accr(6,mt,0)}, {s.accr(6,mt,1)}"))
        ops.append(lambda: s.a(f"v_cvt_pk_bf16_f32 v{d+1}, {s.accr(6,mt,2)}, {s.accr(6,mt,3)}"))
        ops.append(lambda: s.lg.op(f"ds_write_b64 v{s.V_SW6}, v[{d}:{d+1}] offset:{mt*3840 + 192}", ("w", mt)))
        return ops
    def rb_ops(s, mt):
        R = s.RB[mt & 1]
        ops = [lambda: s.lg.wait(("w", mt))]
        for i in range(4):
            ops.append(lambda i=i: s.lg.op(f"ds_read_b128 v[{R+4*i}:{R+4*i+3}], v{s.V_RB} offset:{960*(4*mt+i)}", ("rb", mt, i)))
        return ops
    def st_ops(s, mt):
        R = s.RB[mt & 1]
        ops = []
        for i in range(4):
            def f(i=i):
                s.a(f"s_mov_b32 s44, {28672*(4*mt+i)}")
                s.lg.wait(("rb", mt, i))
                s.vm.op(f"buffer_store_dwordx4 v[{R+4*i}:{R+4*i+3}], v{s.V_GO}, s[32:35], s44 offen {s.o['stpol']}", "st")
            ops.append(f)
        return ops

    def last_step(s, step):
        a, o = s.a, s.o
        if not o["mfma"]:
            for r in range(128, 240): a(f"v_mov_b32 v{r}, 0")
        def group(mt, ops, start):
            k = 0
            for j in range(7):
                s.mfma(step, j, mt)
                if j + 1 >= start:
                    rem = 7 - j
                    n = -(-(len(ops) - k) // rem)
                    for _ in range(n):
                        if k < len(ops): ops[k](); k += 1
            assert k == len(ops)
        group(0, [], 1)
        group(1, s.cvt_ops(0), 2)
        c1 = s.cvt_ops(1)
        group(2, c1[:5] + s.rb_ops(0) + c1[5:], 2)
        c2 = s.cvt_ops(2)
        st0 = s.st_ops(0)
        group(3, c2[:5] + s.rb_ops(1) + c2[5:10] + st0[:2] + c2[10:] + st0[2:], 2)
        if o["stamps"]: a("s_memtime s[94:95]") if False else None
        c3 = s.cvt_ops(3)
        st1 = s.st_ops(1)
        a("s_nop 0")
        seq = s.rb_ops(2) + c3[:5] + st1[:2] + c3[5:10] + st1[2:] + c3[10:]
        for f in seq: f()
        st2 = s.st_ops(2)
        for f in s.rb_ops(3): f()
        for f in st2: f()
        for f in s.st_ops(3): f()

    def epilogue_simple(s):
        a, o = s.a, s.o
        if not o["store"]: return
        if not o["mfma"]:
            for r in range(128, 240): a(f"v_mov_b32 v{r}, 0")
        a("s_nop 7"); a("s_nop 1")
        for mt in range(4):
            for f in s.cvt_ops(mt): f()
            for f in s.rb_ops(mt): f()
            for f in s.st_ops(mt): f()

    def write_stamps(s):
        a, o = s.a, s.o
        a("s_waitcnt vmcnt(0)")
        a("s_memtime s[98:99]")
        a("s_memrealtime s[100:101]")
        a("s_waitcnt lgkmcnt(0)")
        a("s_cmp_lg_u32 s39, 0")
        a("s_cbranch_scc1 L_nostamp")
        a("s_mov_b32 s16, s14")
        a("s_mov_b32 s17, s15")
        a("s_mov_b32 s18, %d" % (256 if o["dbg"] else 0x100000))
        a("s_mov_b32 s19, 0x20000")
        if o["dbg"]:
            a(f"s_cmp_lg_u32 s2, {o['dbg']-1}")
            a("s_cbranch_scc1 L_nostamp")
            a("v_mov_b32 v1, 0")
            for i in range(16):
                r = [64, 66, 68, 70, 72, 74, 76, 78, 80, 84, 88, 92, 94, 96, 98][i] if i < 15 else None
                if r is None: a("s_sub_u32 s45, s100, s60")
                else: a(f"s_sub_u32 s45, s{r}, s62")
                a("v_mov_b32 v2, s45")
                a(f"buffer_store_dword v2, v1, s[16:19], 0 offen offset:{4*i}")
        else:
            a("s_lshl_b32 s45, s2, 8")
            a("v_mov_b32 v1, s45")
            vals = [60, 62] + [64+2*t for t in range(16)] + [96, 98, 100]
            for i, r in enumerate(vals):
                a(f"v_mov_b32 v2, s{r}")
                a(f"buffer_store_dword v2, v1, s[16:19], 0 offen offset:{4*i}")
            a("s_getreg_b32 s45, hwreg(HW_REG_XCC_ID)")
            a("v_mov_b32 v2, s45")
            a(f"buffer_store_dword v2, v1, s[16:19], 0 offen offset:{4*len(vals)}")
        a("s_waitcnt vmcnt(0)")
        s.lab("L_nostamp")

    PQ = 16
    PT = 24
    PWA, PWB = 25, 26
    P_TQ, P_TD = 8, 9
    SF = 28
    PK = (44, 48)
    TT = (52, 60)
    QS = (128, 160, 192, 224)

    def qload_ops(s, t):
        o = s.o
        if not o["qload"] or t >= NS: return []
        kk = (t % o["fixq"]) if o["fixq"] else t
        ops = []
        for i in range(8):
            r = s.QS[t % o["lq"]] + 4*i
            pre = [f"s_mov_b32 s48, {kk*64*14336}"] if i == 0 else []
            ops.append((pre, f"buffer_load_dwordx4 v[{r}:{r+3}], v{s.PQ+i}, s[20:23], s48 offen {o['qpol']}", ("q", t)))
        return ops
    def emit_vm(s, op):
        pre, text, tag = op
        for p in pre: s.a(p)
        s.vm.op(text, tag)

    def tread(s, g):
        if g >= NS: return
        s.lg.op(f"ds_read_b128 v[{s.SF}:{s.SF+3}], v{s.PT} offset:{g*448}", "tr")
        s.lg.op(f"ds_read_b128 v[{s.SF+4}:{s.SF+7}], v{s.PT} offset:{g*448 + 16*448}", "tr")

    def deq_ops(s, t):
        o = s.o
        A = lambda txt: (lambda: s.a(txt))
        ops = []
        q = s.QS[t % o["lq"]]
        ws = (t % 2) * WSLOT
        for e in range(4):
            T, P = s.TT[e & 1], s.PK[e & 1]
            if o["deq"]:
                if o["deqmode"] == "fma":
                    for i in range(8): ops.append(A(f"v_cvt_f32_i32 v{T+i}, v{q+4*i+e}"))
                    for i in range(8): ops.append(A(f"v_fma_f32 v{T+i}, v{T+i}, v{s.SF+e}, v{s.SF+4+e}"))
                else:
                    for i in range(8): ops.append(A(f"v_fma_mix_f32 v{T+i}, v{q+4*i+e}, v{s.SF+e}, v{s.SF+4+e} op_sel_hi:[1,0,0]"))
                if e == 3: ops.append(lambda: s.tread(t+1))
                for i in range(4): ops.append(A(f"v_cvt_pk_bf16_f32 v{P+i}, v{T+2*i}, v{T+2*i+1}"))
            if o["wwrite"]:
                ad = s.PWA if e < 2 else s.PWB
                ops.append(lambda ad=ad, P=P, e=e: s.lg.op(f"ds_write_b128 v{ad}, v[{P}:{P+3}] offset:{ws + (e&1)*128}", "w"))
        return ops

    def interleave(s, ops, vms, frac=0.75):
        nv = len(vms); n = max(int(len(ops)*frac), 1)
        k = 0
        for i, f in enumerate(ops):
            while k < nv and k * n <= i * nv:
                s.emit_vm(vms[k]); k += 1
            f()
        while k < nv:
            s.emit_vm(vms[k]); k += 1

    def producer(s):
        a, o = s.a, s.o
        s.vm = WCtr(s, "vmcnt", 63); s.lg = Ctr(s, "lgkmcnt", 15)
        s.lab("L_prod")
        a("s_sub_u32 s39, s39, 4")
        if o["pprio"]: a(f"s_setprio {o['pprio']}")
        a("v_and_b32 v1, 31, v0")
        a("v_min_u32 v1, 27, v1")
        a("v_lshrrev_b32 v2, 5, v0")
        a("s_lshl_b32 s40, s39, 1")
        a("v_add_u32 v2, s40, v2")
        a("s_mov_b32 s41, 114688")
        a("v_mul_lo_u32 v3, v2, s41")
        a("v_lshl_add_u32 v3, v1, 4, v3")
        a("s_mul_i32 s42, s36, 448")
        a(f"v_add_u32 v{s.PQ}, s42, v3")
        q0 = s.qload_ops(0)
        for i in range(8):
            if i: a(f"v_add_u32 v{s.PQ+i}, {14336*i}, v{s.PQ}")
            if q0: s.emit_vm(q0[i])
        pending = []
        for t in range(1, o["lq"]):
            pending += s.qload_ops(t)
        npre = 8 * (o["pro"] - 1)
        for op in pending[:npre]: s.emit_vm(op)
        pending = pending[npre:]
        a("v_lshrrev_b32 v3, 3, v1")
        a("v_lshlrev_b32 v3, 5, v3")
        a("v_and_b32 v4, 1, v1")
        a("v_lshl_add_u32 v3, v4, 4, v3")
        a("v_bfe_u32 v4, v1, 1, 2")
        a("v_lshl_add_u32 v3, v4, 2, v3")
        a("v_lshlrev_b32 v4, 2, v1")
        a("v_cmp_le_u32 vcc, 24, v1")
        a(f"v_lshlrev_b32 v{s.PT}, 4, v1")
        a(f"v_add_u32 v{s.PT}, {TB}, v{s.PT}")
        a("v_cndmask_b32 v3, v3, v4, vcc")
        a("v_bfe_u32 v4, v3, 1, 3")
        a("v_bfe_u32 v5, v3, 4, 1")
        a("v_xor_b32 v4, v4, v5")
        a("v_xor_b32 v4, v4, v2")
        a("v_lshlrev_b32 v3, 7, v3")
        a("v_lshl_add_u32 v3, v4, 4, v3")
        a(f"v_add_u32 v{s.PWA}, {WB}, v3")
        a(f"v_add_u32 v3, {WB+256}, v3")
        a(f"v_xor_b32 v{s.PWB}, 16, v3")
        rs = s.roll_sched() if o["tw"] == "p" else []
        if rs: s.touch_addr_q(s.P_TQ)
        if not o["deq"]:
            for r in range(s.PK[0], s.PK[0]+8): a(f"v_mov_b32 v{r}, 0")
        a("s_barrier")
        s.tread(0)
        s.lg.all()
        for t in range(-1, NS-1):
            s.vm.wait(("q", t+1))
            vms = pending if t == -1 else s.qload_ops(t + o["lq"])
            s.interleave(s.deq_ops(t+1), vms)
            for P, stg, wv in rs:
                if P == t:
                    def tq(stg=stg):
                        a(f"s_add_u32 s44, s57, {stg*64*14336}")
                        s.vm.op(f"buffer_load_dword v{s.P_TD}, v{s.P_TQ}, s[20:23], s44 offen {o['tqpol']}", "t")
                    s.only_wave(wv, tq)
            s.lg.all()
            a("s_barrier")
        s.rep_tail("L_repdone2")
        a("s_endpgm")

    def build(s):
        s.setup()
        s.consumer()
        s.producer()
        s.lab("L_end")
        s.a("s_endpgm")
        hdr = open("cdna_kernels/%s.s.ref" % NAME).read().split("; Override launch")[0]
        out = hdr + f"; @launch grid=(256,1,1) block=(512,1,1) lds={LDS}\n"
        out += f'.amdgcn_target "amdgcn-amd-amdhsa--gfx950"\n.text\n.globl {NAME}_kernel\n.p2align 8\n.type {NAME}_kernel,@function\n{NAME}_kernel:\n'
        out += "\n".join(s.L) + "\n"
        out += f""".section .rodata,"a"
.p2align 6
.amdhsa_kernel {NAME}_kernel
  .amdhsa_next_free_vgpr 256
  .amdhsa_next_free_sgpr 102
  .amdhsa_accum_offset 256
  .amdhsa_group_segment_fixed_size 0
  .amdhsa_kernarg_size 56
  .amdhsa_user_sgpr_count 2
  .amdhsa_user_sgpr_kernarg_segment_ptr 1
  .amdhsa_system_sgpr_workgroup_id_x 1
  .amdhsa_float_denorm_mode_32 3
.end_amdhsa_kernel
"""
        return out

if __name__ == "__main__":
    out = sys.argv[1]
    kw = {}
    for x in sys.argv[2:]:
        k, v = x.split("=")
        kw[k] = int(v) if v.lstrip("-").isdigit() else (v.replace("_", " ").replace("none", "") if k.endswith("pol") else v)
    open(out, "w").write(Gen(**kw).build())
```

```python
import sys

NAME = "standalone__weight_only_int_quip_2__prompt"
M, K, N = 2048, 1024, 3584
XB, QB, SB, OB = M*K*2, K*N*4, 16*N*2, M*N*2
NXS = 3
WB = NXS*32768
WSLOT = 14336
TB = WB + 2*WSLOT
TC = TB + 16*448
LDS = TC + 16*448
STG = 32768
NS = 16

DEF = dict(
    mfma=1, deq=1, store=1, xload=1, qload=1, reads=1, wwrite=1,
    stamps=0, dbg=0, prio=0, pprio=0, xcdmap=4, deqmode="fma",
    stpol="", xpol="", qpol="", tqpol="nt", txpol="",
    reps=1, fixx=0, fixq=0,
    tx=1,
    tq=1,
    tqd=0,
    epi=1,
    pro=2,
    lq=3,
    tq0=2,
    tqs=2,
    txd=0,
    tw="p",
    xpos=1,
    xgap=3,
    xsplit=0,
)

class Ctr:
    def __init__(s, g, name, mx): s.g, s.name, s.mx, s.q = g, name, mx, []
    def op(s, text, tag): s.g.a(text); s.q.append(tag)
    def wait(s, tag):
        idx = [i for i, t in enumerate(s.q) if t == tag]
        if not idx: return
        n = len(s.q) - 1 - idx[-1]
        if n > s.mx: n = s.mx
        s.g.a(f"s_waitcnt {s.name}({n})")
        s.q = s.q[len(s.q)-n:] if n else []
    def all(s):
        s.g.a(f"s_waitcnt {s.name}(0)"); s.q = []

class WCtr:
    def __init__(s, g, name, mx): s.g, s.name, s.mx = g, name, mx; s.q = [[] for _ in range(4)]; s.cur = (0,1,2,3)
    def op(s, text, tag):
        s.g.a(text)
        for w in s.cur: s.q[w].append(tag)
    def wait(s, tag):
        ns = []
        for w in s.cur:
            idx = [i for i, t in enumerate(s.q[w]) if t == tag]
            if idx: ns.append(len(s.q[w]) - 1 - idx[-1])
        if not ns: return
        n = min(min(ns), s.mx)
        s.g.a(f"s_waitcnt {s.name}({n})")
        for w in s.cur: s.q[w] = s.q[w][len(s.q[w])-n:] if n else []
    def all(s):
        s.g.a(f"s_waitcnt {s.name}(0)")
        for w in s.cur: s.q[w] = []

class Gen:
    def __init__(s, **kw):
        s.o = dict(DEF)
        for k in kw: assert k in DEF, k
        s.o.update(kw)
        s.L = []
        s.nlab = 0
    def a(s, t): s.L.append("    " + t)
    def lab(s, t): s.L.append(t + ":")
    def newlab(s): s.nlab += 1; return f"L_{s.nlab}"

    def setup(s):
        a, o = s.a, s.o
        a("s_cmp_ge_u32 s2, 256")
        a("s_cbranch_scc1 L_end")
        a("s_load_dwordx8 s[4:11], s[0:1], 0")
        a("s_load_dwordx2 s[12:13], s[0:1], 32")
        if o["stamps"]:
            a("s_load_dwordx2 s[14:15], s[0:1], %d" % (40 if o["dbg"] else 48))
            a("s_memrealtime s[60:61]")
            a("s_memtime s[62:63]")
        a("v_lshrrev_b32 v1, 6, v0")
        a("v_and_b32 v0, 63, v0")
        xm = o["xcdmap"]
        a("s_and_b32 s36, s2, 7")
        a("s_lshr_b32 s37, s2, 3")
        if xm == 4:
            a("s_and_b32 s38, s37, 3")
            a("s_lshl_b32 s36, s36, 2")
            a("s_add_u32 s36, s36, s38")
            a("s_lshr_b32 s37, s37, 2")
        elif xm == 8:
            a("s_and_b32 s38, s37, 7")
            a("s_and_b32 s40, s36, 3")
            a("s_lshl_b32 s40, s40, 3")
            a("s_lshr_b32 s36, s36, 2")
            a("s_lshl_b32 s36, s36, 2")
            a("s_lshr_b32 s37, s37, 3")
            a("s_add_u32 s37, s37, s36")
            a("s_add_u32 s36, s40, s38")
        a("v_readfirstlane_b32 s39, v1")
        a("s_waitcnt lgkmcnt(0)")
        for base, src, size in ((16, 4, XB), (20, 6, QB), (32, 12, OB)):
            a(f"s_mov_b32 s{base}, s{src}")
            a(f"s_mov_b32 s{base+1}, s{src+1}")
            a(f"s_mov_b32 s{base+2}, {size}")
            a(f"s_mov_b32 s{base+3}, 0x20000")
        if o["reps"] > 1:
            a(f"s_mov_b32 s52, {o['reps']}")
            a("s_mov_b32 s53, s39")
            s.lab("L_rep")
            a("s_mov_b32 s39, s53")
            a("v_mbcnt_lo_u32_b32 v0, -1, 0")
            a("v_mbcnt_hi_u32_b32 v0, -1, v0")
            a("s_barrier")
            if o["stamps"]:
                a("s_memrealtime s[60:61]")
                a("s_memtime s[62:63]")
                a("s_waitcnt lgkmcnt(0)")
        a("s_cmp_ge_u32 s39, 4")
        a("s_cbranch_scc1 L_prod")

    def mark(s, name):
        if s.o["stamps"] != 2: return
        i = len(s.marks); assert i < 16
        s.marks.append(name)
        s.a(f"s_memtime s[{64+2*i}:{65+2*i}]")

    def write_marks(s, role):
        a = s.a
        lab = s.newlab()
        a("s_waitcnt vmcnt(0)")
        a("s_memtime s[98:99]")
        a("s_memrealtime s[100:101]")
        a("s_waitcnt lgkmcnt(0)")
        a("s_cmp_lg_u32 s39, 0")
        a(f"s_cbranch_scc1 {lab}")
        a("s_mov_b32 s16, s14"); a("s_mov_b32 s17, s15"); a("s_mov_b32 s18, 0x100000"); a("s_mov_b32 s19, 0x20000")
        a("s_lshl_b32 s45, s2, 8")
        a(f"s_add_u32 s45, s45, {role*128}")
        a("v_mov_b32 v1, s45")
        vals = [60, 62] + [64+2*t for t in range(len(s.marks))] + [98, 100]
        for i, r in enumerate(vals):
            a(f"v_mov_b32 v2, s{r}")
            a(f"buffer_store_dword v2, v1, s[16:19], 0 offen offset:{4*i}")
        a("s_waitcnt vmcnt(0)")
        s.lab(lab)
        print("marks", role, s.marks + ["end"], file=sys.stderr)

    def rep_tail(s, lab):
        a, o = s.a, s.o
        if o["reps"] > 1:
            a("s_waitcnt vmcnt(0) lgkmcnt(0)")
            a("s_sub_u32 s52, s52, 1")
            a("s_cmp_lg_u32 s52, 0")
            a(f"s_cbranch_scc0 {lab}")
            a("s_branch L_rep")
            s.lab(lab)

    ACC = 128
    XF = (8, 24)
    WF = (40, 68)
    VX = {(0,0):96, (1,0):97, (0,1):98, (1,1):99}
    CX = 112
    VW = {(0,0):100, (1,0):101, (0,1):102, (1,1):103}
    V_SW, V_SW6, V_RB, V_GO = 104, 105, 106, 107
    V_TT, V_TQ, V_TX, V_TD = 108, 109, 110, 111
    RB = (112, 240)
    CT = (8, 40)
    def acc(s, j, mt): b = s.ACC + 4*(j*4+mt); return f"v[{b}:{b+3}]"
    def accr(s, j, mt, r): return f"v{s.ACC + 4*(j*4+mt) + r}"

    def c_reads(s, step):
        t, h, b = step // 2, step % 2, step % 2
        xs, ws = t % NXS, t % 2
        xr = [f"ds_read_b128 v[{s.XF[b]+4*mt}:{s.XF[b]+4*mt+3}], v{s.VX[(h, xs>>1)]} offset:{(xs&1)*32768 + mt*2048}" for mt in range(4)]
        wr = [f"ds_read_b128 v[{s.WF[b]+4*j}:{s.WF[b]+4*j+3}], v{s.VW[(h, j&1)]} offset:{ws*WSLOT + j*2048}" for j in range(7)]
        return [wr[0]] + xr + wr[1:]

    def mfma(s, step, j, mt):
        if not s.o["mfma"]: return
        b = step % 2
        c = "0" if step == 0 else s.acc(j, mt)
        s.a(f"v_mfma_f32_16x16x32_bf16 {s.acc(j,mt)}, v[{s.WF[b]+4*j}:{s.WF[b]+4*j+3}], v[{s.XF[b]+4*mt}:{s.XF[b]+4*mt+3}], {c}")

    def c_step(s, step, reads, extra=None):
        ri, n = 0, 0
        for j in range(7):
            for mt in range(4):
                s.mfma(step, j, mt)
                n += 1
                if ri < len(reads) and n >= 2:
                    if s.o["reads"]: s.lg.op(reads[ri], "r")
                    ri += 1
                if extra and n in extra: extra[n]()

    def only_wave(s, w, fn, cmp="s_cmp_lg_u32"):
        lab = s.newlab()
        s.a(f"{cmp} s39, {w}")
        s.a(f"s_cbranch_scc1 {lab}")
        old = s.vm.cur
        s.vm.cur = {"s_cmp_lg_u32": (w,), "s_cmp_ge_u32": tuple(range(w)), "s_cmp_lt_u32": tuple(range(w, 4))}[cmp]
        fn()
        s.vm.cur = old
        s.lab(lab)

    def touch_q(s, st):
        s.a(f"s_add_u32 s44, s57, {st*64*14336}")
        s.vm.op(f"buffer_load_dword v{s.V_TD}, v{s.V_TQ}, s[20:23], s44 offen {s.o['tqpol']}", "t")
    def touch_x(s, half):
        s.a(f"s_add_u32 s44, s58, {half*1024}")
        s.vm.op(f"buffer_load_dword v{s.V_TD}, v{s.V_TX}, s[16:19], s44 offen {s.o['txpol']}", "t")

    def xdma_ops(s, t):
        o = s.o
        if not o["xload"] or t >= NS: return []
        slot = t % NXS
        kk = (t % o["fixx"]) if o["fixx"] else t
        ops = []
        for i in range(8):
            def f(i=i):
                if i == 0: s.a(f"s_movk_i32 s46, {kk*128}")
                s.vm.op(f"buffer_load_dwordx4 v{s.CX+i}, s[16:19], s46 offen offset:{(i&3)*1024} {o['xpol']} lds", ("x", t))
            def g(i=i):
                s.a(f"s_add_u32 m0, s47, {slot*32768 + (i>>2)*4096}")
            ops.append((g if i % 4 == 0 else None, f))
        return ops

    def touch_addr_q(s, vt):
        a = s.a
        a("v_bfe_u32 v4, v0, 2, 3")
        a("v_mul_u32_u24 v4, 14336, v4")
        a("v_and_b32 v5, 3, v0")
        a("v_lshl_add_u32 v4, v5, 7, v4")
        a("v_lshrrev_b32 v5, 5, v0")
        a("v_mul_u32_u24 v5, 64*14336, v5")
        a(f"v_add_u32 v{vt}, v4, v5")
        a("s_mul_i32 s57, s37, 8*14336")
        a("s_mul_i32 s41, s36, 448")
        a("s_and_b32 s41, s41, 0xffffff80")
        a("s_add_u32 s57, s57, s41")

    def roll_sched(s):
        o = s.o
        if o["tq"] != 1: return []
        first = o["tqs"] + 2*o["tq0"]
        return [(k*2 + o["tqd"], st, k & 3) for k, st in enumerate(range(first, NS, 2))]

    def consumer(s):
        a, o = s.a, s.o
        s.vm = WCtr(s, "vmcnt", 63); s.lg = Ctr(s, "lgkmcnt", 15)
        s.marks = []
        s.mark("role")
        a("v_lshrrev_b32 v3, 3, v0")
        a("s_lshl_b32 s42, s37, 8")
        a("s_lshl_b32 s43, s39, 6")
        a("s_add_u32 s42, s42, s43")
        a("v_add_u32 v3, s42, v3")
        a("v_lshlrev_b32 v3, 11, v3")
        a("v_and_b32 v4, 7, v0")
        a("v_lshrrev_b32 v5, 4, v0")
        a("v_xor_b32 v4, v4, v5")
        a(f"v_lshl_add_u32 v{s.CX}, v4, 4, v3")
        a(f"v_xor_b32 v4, 64, v{s.CX}")
        a("s_lshl_b32 s47, s39, 13")
        a("s_mov_b32 s24, s8"); a("s_mov_b32 s25, s9"); a(f"s_mov_b32 s26, {SB}"); a("s_mov_b32 s27, 0x20000")
        a("s_mov_b32 s28, s10"); a("s_mov_b32 s29, s11"); a(f"s_mov_b32 s30, {SB}"); a("s_mov_b32 s31, 0x20000")
        a("v_and_b32 v1, 31, v0")
        a("v_min_u32 v1, 27, v1")
        a("v_lshrrev_b32 v2, 5, v0")
        a("v_mul_u32_u24 v5, 7168, v2")
        a("v_lshl_add_u32 v5, v1, 3, v5")
        a("s_mul_i32 s40, s39, 4*7168")
        a("s_mul_i32 s41, s36, 224")
        a("s_add_u32 s40, s40, s41")
        a("s_add_u32 s41, s40, 2*7168")
        s.vm.op("buffer_load_dwordx2 v[8:9], v5, s[24:27], s40 offen", "tab")
        s.vm.op("buffer_load_dwordx2 v[10:11], v5, s[28:31], s40 offen", "tab")
        s.vm.op("buffer_load_dwordx2 v[12:13], v5, s[24:27], s41 offen", "tab")
        s.vm.op("buffer_load_dwordx2 v[14:15], v5, s[28:31], s41 offen", "tab")
        x0 = s.xdma_ops(0)
        for i in range(8):
            if i:
                src = "v4" if i & 1 else f"v{s.CX}"
                a(f"v_add_u32 v{s.CX+i}, {i*16384 - (i&3)*1024}, {src}")
            if x0:
                if x0[i][0]: x0[i][0](); a("s_nop 0")
                x0[i][1]()
        s.mark("x0iss")
        a("v_mul_u32_u24 v6, 448, v2")
        a("v_lshl_add_u32 v6, v1, 4, v6")
        a("s_mul_i32 s40, s39, 4*448")
        a(f"s_add_u32 s40, s40, {TB}")
        a("v_add_u32 v6, s40, v6")
        if o["tx"]:
            a("v_lshrrev_b32 v1, 3, v0")
            a("v_lshlrev_b32 v1, 11, v1")
            a("v_and_b32 v2, 7, v0")
            a(f"v_lshl_add_u32 v{s.V_TX}, v2, 7, v1")
            a("s_lshl_b32 s40, s37, 8")
            a("s_lshl_b32 s41, s36, 3")
            a("s_add_u32 s40, s40, s41")
            a("s_lshl_b32 s58, s40, 11")
            def xt():
                s.only_wave(0, lambda: s.touch_x(0))
                if o["tx"] == 1: s.only_wave(3, lambda: s.touch_x(1))
            if o["txd"] == 0: xt()
        if o["tq"]:
            s.touch_addr_q(s.V_TQ)
            last = NS if o["tq"] == 2 else o["tqs"] + 2*o["tq0"]
            for k, st in enumerate(range(o["tqs"], last, 2)):
                s.only_wave((1, 2, 0, 3)[k & 3], lambda: s.touch_q(st))
        for g, f in s.xdma_ops(1):
            if g: g(); a("s_nop 0")
            f()
        if o["prio"]: a(f"s_setprio {o['prio']}")
        a("v_and_b32 v1, 15, v0")
        a("v_lshrrev_b32 v2, 4, v0")
        a("v_lshrrev_b32 v3, 1, v1")
        a("v_xor_b32 v3, v2, v3")
        a("v_lshlrev_b32 v3, 4, v3")
        a("v_lshl_add_u32 v3, v1, 7, v3")
        a("s_lshl_b32 s40, s39, 13")
        a(f"v_add_u32 v{s.VX[(0,0)]}, s40, v3")
        a(f"v_xor_b32 v{s.VX[(1,0)]}, 64, v{s.VX[(0,0)]}")
        a(f"v_add_u32 v{s.VX[(0,1)]}, 0x10000, v{s.VX[(0,0)]}")
        a(f"v_add_u32 v{s.VX[(1,1)]}, 0x10000, v{s.VX[(1,0)]}")
        a(f"v_add_u32 v{s.VW[(0,0)]}, {WB}, v3")
        a(f"v_xor_b32 v{s.VW[(1,0)]}, 64, v{s.VW[(0,0)]}")
        a(f"v_xor_b32 v{s.VW[(0,1)]}, 16, v{s.VW[(0,0)]}")
        a(f"v_xor_b32 v{s.VW[(1,1)]}, 16, v{s.VW[(1,0)]}")
        a("s_mul_i32 s41, s39, 15360")
        a(f"s_add_u32 s41, s41, {STG}")
        a("v_mul_u32_u24 v4, 240, v1")
        a("v_add_u32 v4, s41, v4")
        a(f"v_lshl_add_u32 v{s.V_SW}, v2, 4, v4")
        a(f"v_lshl_add_u32 v{s.V_SW6}, v2, 3, v4")
        a("v_min_u32 v4, 55, v0")
        a("v_mul_u32_u24 v5, 37, v4")
        a("v_lshrrev_b32 v5, 9, v5")
        a("v_mul_u32_u24 v3, 14, v5")
        a("v_sub_u32 v3, v4, v3")
        a("v_mul_u32_u24 v7, 240, v5")
        a("v_lshl_add_u32 v7, v3, 4, v7")
        a(f"v_add_u32 v{s.V_RB}, s41, v7")
        a("s_lshl_b32 s42, s37, 8")
        a("s_lshl_b32 s43, s39, 6")
        a("s_add_u32 s42, s42, s43")
        a("s_mul_i32 s42, s42, 7168")
        a("s_mul_i32 s43, s36, 224")
        a("s_add_u32 s42, s42, s43")
        a("v_mul_u32_u24 v7, 7168, v5")
        a("v_lshl_add_u32 v7, v3, 4, v7")
        a(f"v_add_u32 v{s.V_GO}, s42, v7")
        s.mark("addr")
        s.vm.wait("tab")
        s.mark("tab")
        for hb in range(2):
            r = 8 + 4*hb
            S, Z = 16 + 8*hb, 32
            a(f"v_lshlrev_b32 v{S}, 16, v{r}"); a(f"v_and_b32 v{S+1}, 0xffff0000, v{r}")
            a(f"v_lshlrev_b32 v{S+2}, 16, v{r+1}"); a(f"v_and_b32 v{S+3}, 0xffff0000, v{r+1}")
            a(f"v_lshlrev_b32 v{Z}, 16, v{r+2}"); a(f"v_and_b32 v{Z+1}, 0xffff0000, v{r+2}")
            a(f"v_lshlrev_b32 v{Z+2}, 16, v{r+3}"); a(f"v_and_b32 v{Z+3}, 0xffff0000, v{r+3}")
            for e in range(4): a(f"v_mul_f32_e64 v{S+4+e}, -v{Z+e}, v{S+e}")
            if o["deqmode"] == "mix":
                for e in range(4): a(f"v_mul_f32 v{S+e}, 0x4b800000, v{S+e}")
            s.lg.op(f"ds_write_b128 v6, v[{S}:{S+3}] offset:{hb*896}", "tw")
            s.lg.op(f"ds_write_b128 v6, v[{S+4}:{S+7}] offset:{hb*896 + 16*448}", "tw")
        s.lg.all()
        a("s_barrier")
        s.mark("B-1")
        if o["tx"] and o["txd"] == 1: xt()
        if not o["reads"]:
            for r in range(8, 96): a(f"v_mov_b32 v{r}, 0")
        s.vm.wait(("x", 0))
        s.mark("x0")
        a("s_barrier")
        if o["stamps"] == 1: a("s_memtime s[64:65]")
        s.mark("B0")
        if o["reads"]:
            for r in s.c_reads(0): s.lg.op(r, "r")
        if o["tx"] and o["txd"] == 2: xt()
        nsteps = 2*NS
        ex = {}
        def add(step, n, fn):
            d = ex.setdefault(step, {})
            old = d.get(n)
            d[n] = fn if old is None else (lambda old=old, fn=fn: (old(), fn()))
        for t in range(NS):
            ops = s.xdma_ops(t+2)
            for i, (g, f) in enumerate(ops):
                if t == 0: st, n = 0, o["xpos"] + 1 + i*o["xgap"]
                elif o["xsplit"]: st, n = 2*t - 1 + i // 4, o["xpos"] + 1 + (i % 4)*o["xgap"]*2
                else: st, n = 2*t - 1, o["xpos"] + 1 + i*o["xgap"]
                assert n <= 28
                if g: add(st, n - 1, g)
                add(st, n, f)
        if o["tw"] == "c":
            for P, stg, wv in s.roll_sched():
                add(2*P - 1, 28, (lambda stg=stg, wv=wv: s.only_wave(wv, lambda: s.touch_q(stg))))
        if o["tx"] == 2:
            add(1, 28, lambda: s.only_wave(3, lambda: s.touch_x(1)))
        for step in range(nsteps):
            if step % 2 == 1 and step < nsteps - 1:
                t = (step+1)//2
                s.lg.all()
                s.vm.wait(("x", t))
                a("s_barrier")
                if o["stamps"] == 1: a(f"s_memtime s[{64+2*t}:{65+2*t}]")
                if t in (1, 2, 3, 15): s.mark(f"B{t}")
            else:
                s.lg.all()
            if step == nsteps - 1 and o["epi"] and o["store"]:
                s.last_step(step)
            else:
                reads = s.c_reads(step+1) if step + 1 < nsteps else []
                s.c_step(step, reads, ex.get(step))
        if o["stamps"] == 1: a("s_memtime s[96:97]")
        s.mark("mainend")
        if not (o["epi"] and o["store"]): s.epilogue_simple()
        s.rep_tail("L_repdone")
        if o["stamps"] == 1: s.write_stamps()
        if o["stamps"] == 2: s.write_marks(0)
        a("s_endpgm")

    def cvt_ops(s, mt):
        t = s.CT[mt & 1]
        ops = []
        for u in range(3):
            d = t + 4*u
            for q, (jj, r) in enumerate(((0,0),(0,2),(1,0),(1,2))):
                ops.append(lambda d=d, q=q, jj=jj, r=r, u=u: s.a(f"v_cvt_pk_bf16_f32 v{d+q}, {s.accr(2*u+jj,mt,r)}, {s.accr(2*u+jj,mt,r+1)}"))
            ops.append(lambda d=d, u=u: s.lg.op(f"ds_write_b128 v{s.V_SW}, v[{d}:{d+3}] offset:{mt*3840 + u*64}", ("w", mt)))
        d = t + 12
        ops.append(lambda: s.a(f"v_cvt_pk_bf16_f32 v{d}, {s.accr(6,mt,0)}, {s.accr(6,mt,1)}"))
        ops.append(lambda: s.a(f"v_cvt_pk_bf16_f32 v{d+1}, {s.accr(6,mt,2)}, {s.accr(6,mt,3)}"))
        ops.append(lambda: s.lg.op(f"ds_write_b64 v{s.V_SW6}, v[{d}:{d+1}] offset:{mt*3840 + 192}", ("w", mt)))
        return ops
    def rb_ops(s, mt):
        R = s.RB[mt & 1]
        ops = [lambda: s.lg.wait(("w", mt))]
        for i in range(4):
            ops.append(lambda i=i: s.lg.op(f"ds_read_b128 v[{R+4*i}:{R+4*i+3}], v{s.V_RB} offset:{960*(4*mt+i)}", ("rb", mt, i)))
        return ops
    def st_ops(s, mt):
        R = s.RB[mt & 1]
        ops = []
        for i in range(4):
            def f(i=i):
                s.a(f"s_mov_b32 s44, {28672*(4*mt+i)}")
                s.lg.wait(("rb", mt, i))
                s.vm.op(f"buffer_store_dwordx4 v[{R+4*i}:{R+4*i+3}], v{s.V_GO}, s[32:35], s44 offen {s.o['stpol']}", "st")
            ops.append(f)
        return ops

    def last_step(s, step):
        a, o = s.a, s.o
        if not o["mfma"]:
            for r in range(128, 240): a(f"v_mov_b32 v{r}, 0")
        def group(mt, ops, start):
            k = 0
            for j in range(7):
                s.mfma(step, j, mt)
                if j + 1 >= start:
                    rem = 7 - j
                    n = -(-(len(ops) - k) // rem)
                    for _ in range(n):
                        if k < len(ops): ops[k](); k += 1
            assert k == len(ops)
        group(0, [], 1)
        group(1, s.cvt_ops(0), 2)
        c1 = s.cvt_ops(1)
        group(2, c1[:5] + s.rb_ops(0) + c1[5:], 2)
        c2 = s.cvt_ops(2)
        st0 = s.st_ops(0)
        group(3, c2[:5] + s.rb_ops(1) + c2[5:10] + st0[:2] + c2[10:] + st0[2:], 2)
        if o["stamps"]: a("s_memtime s[94:95]") if False else None
        c3 = s.cvt_ops(3)
        st1 = s.st_ops(1)
        a("s_nop 0")
        seq = s.rb_ops(2) + c3[:5] + st1[:2] + c3[5:10] + st1[2:] + c3[10:]
        for f in seq: f()
        st2 = s.st_ops(2)
        for f in s.rb_ops(3): f()
        for f in st2: f()
        for f in s.st_ops(3): f()

    def epilogue_simple(s):
        a, o = s.a, s.o
        if not o["store"]: return
        if not o["mfma"]:
            for r in range(128, 240): a(f"v_mov_b32 v{r}, 0")
        a("s_nop 7"); a("s_nop 1")
        for mt in range(4):
            for f in s.cvt_ops(mt): f()
            for f in s.rb_ops(mt): f()
            for f in s.st_ops(mt): f()

    def write_stamps(s):
        a, o = s.a, s.o
        a("s_waitcnt vmcnt(0)")
        a("s_memtime s[98:99]")
        a("s_memrealtime s[100:101]")
        a("s_waitcnt lgkmcnt(0)")
        a("s_cmp_lg_u32 s39, 0")
        a("s_cbranch_scc1 L_nostamp")
        a("s_mov_b32 s16, s14")
        a("s_mov_b32 s17, s15")
        a("s_mov_b32 s18, %d" % (256 if o["dbg"] else 0x100000))
        a("s_mov_b32 s19, 0x20000")
        if o["dbg"]:
            a(f"s_cmp_lg_u32 s2, {o['dbg']-1}")
            a("s_cbranch_scc1 L_nostamp")
            a("v_mov_b32 v1, 0")
            for i in range(16):
                r = [64, 66, 68, 70, 72, 74, 76, 78, 80, 84, 88, 92, 94, 96, 98][i] if i < 15 else None
                if r is None: a("s_sub_u32 s45, s100, s60")
                else: a(f"s_sub_u32 s45, s{r}, s62")
                a("v_mov_b32 v2, s45")
                a(f"buffer_store_dword v2, v1, s[16:19], 0 offen offset:{4*i}")
        else:
            a("s_lshl_b32 s45, s2, 8")
            a("v_mov_b32 v1, s45")
            vals = [60, 62] + [64+2*t for t in range(16)] + [96, 98, 100]
            for i, r in enumerate(vals):
                a(f"v_mov_b32 v2, s{r}")
                a(f"buffer_store_dword v2, v1, s[16:19], 0 offen offset:{4*i}")
            a("s_getreg_b32 s45, hwreg(HW_REG_XCC_ID)")
            a("v_mov_b32 v2, s45")
            a(f"buffer_store_dword v2, v1, s[16:19], 0 offen offset:{4*len(vals)}")
        a("s_waitcnt vmcnt(0)")
        s.lab("L_nostamp")

    PQ = 16
    PT = 24
    PWA, PWB = 25, 26
    P_TQ, P_TD = 8, 9
    SF = 28
    PK = (44, 48)
    TT = (52, 60)
    QS = (128, 160, 192, 224)

    def qload_ops(s, t):
        o = s.o
        if not o["qload"] or t >= NS: return []
        kk = (t % o["fixq"]) if o["fixq"] else t
        ops = []
        for i in range(8):
            r = s.QS[t % o["lq"]] + 4*i
            pre = [f"s_mov_b32 s48, {kk*64*14336}"] if i == 0 else []
            ops.append((pre, f"buffer_load_dwordx4 v[{r}:{r+3}], v{s.PQ+i}, s[20:23], s48 offen {o['qpol']}", ("q", t)))
        return ops
    def emit_vm(s, op):
        pre, text, tag = op
        for p in pre: s.a(p)
        s.vm.op(text, tag)

    def tread(s, g):
        if g >= NS: return
        s.lg.op(f"ds_read_b128 v[{s.SF}:{s.SF+3}], v{s.PT} offset:{g*448}", "tr")
        s.lg.op(f"ds_read_b128 v[{s.SF+4}:{s.SF+7}], v{s.PT} offset:{g*448 + 16*448}", "tr")

    def deq_ops(s, t):
        o = s.o
        A = lambda txt: (lambda: s.a(txt))
        ops = []
        q = s.QS[t % o["lq"]]
        ws = (t % 2) * WSLOT
        for e in range(4):
            T, P = s.TT[e & 1], s.PK[e & 1]
            if o["deq"]:
                if o["deqmode"] == "fma":
                    for i in range(8): ops.append(A(f"v_cvt_f32_i32 v{T+i}, v{q+4*i+e}"))
                    for i in range(8): ops.append(A(f"v_fma_f32 v{T+i}, v{T+i}, v{s.SF+e}, v{s.SF+4+e}"))
                else:
                    for i in range(8): ops.append(A(f"v_fma_mix_f32 v{T+i}, v{q+4*i+e}, v{s.SF+e}, v{s.SF+4+e} op_sel_hi:[1,0,0]"))
                if e == 3: ops.append(lambda: s.tread(t+1))
                for i in range(4): ops.append(A(f"v_cvt_pk_bf16_f32 v{P+i}, v{T+2*i}, v{T+2*i+1}"))
            if o["wwrite"]:
                ad = s.PWA if e < 2 else s.PWB
                ops.append(lambda ad=ad, P=P, e=e: s.lg.op(f"ds_write_b128 v{ad}, v[{P}:{P+3}] offset:{ws + (e&1)*128}", "w"))
        return ops

    def interleave(s, ops, vms, frac=0.75):
        nv = len(vms); n = max(int(len(ops)*frac), 1)
        k = 0
        for i, f in enumerate(ops):
            while k < nv and k * n <= i * nv:
                s.emit_vm(vms[k]); k += 1
            f()
        while k < nv:
            s.emit_vm(vms[k]); k += 1

    def producer(s):
        a, o = s.a, s.o
        s.vm = WCtr(s, "vmcnt", 63); s.lg = Ctr(s, "lgkmcnt", 15)
        s.lab("L_prod")
        s.marks = []
        s.mark("role")
        a("s_sub_u32 s39, s39, 4")
        if o["pprio"]: a(f"s_setprio {o['pprio']}")
        a("v_and_b32 v1, 31, v0")
        a("v_min_u32 v1, 27, v1")
        a("v_lshrrev_b32 v2, 5, v0")
        a("s_lshl_b32 s40, s39, 1")
        a("v_add_u32 v2, s40, v2")
        a("s_mov_b32 s41, 114688")
        a("v_mul_lo_u32 v3, v2, s41")
        a("v_lshl_add_u32 v3, v1, 4, v3")
        a("s_mul_i32 s42, s36, 448")
        a(f"v_add_u32 v{s.PQ}, s42, v3")
        q0 = s.qload_ops(0)
        for i in range(8):
            if i: a(f"v_add_u32 v{s.PQ+i}, {14336*i}, v{s.PQ}")
            if q0: s.emit_vm(q0[i])
        s.mark("q0iss")
        pending = []
        for t in range(1, o["lq"]):
            pending += s.qload_ops(t)
        npre = 8 * (o["pro"] - 1)
        for op in pending[:npre]: s.emit_vm(op)
        pending = pending[npre:]
        a("v_lshrrev_b32 v3, 3, v1")
        a("v_lshlrev_b32 v3, 5, v3")
        a("v_and_b32 v4, 1, v1")
        a("v_lshl_add_u32 v3, v4, 4, v3")
        a("v_bfe_u32 v4, v1, 1, 2")
        a("v_lshl_add_u32 v3, v4, 2, v3")
        a("v_lshlrev_b32 v4, 2, v1")
        a("v_cmp_le_u32 vcc, 24, v1")
        a(f"v_lshlrev_b32 v{s.PT}, 4, v1")
        a(f"v_add_u32 v{s.PT}, {TB}, v{s.PT}")
        a("v_cndmask_b32 v3, v3, v4, vcc")
        a("v_bfe_u32 v4, v3, 1, 3")
        a("v_bfe_u32 v5, v3, 4, 1")
        a("v_xor_b32 v4, v4, v5")
        a("v_xor_b32 v4, v4, v2")
        a("v_lshlrev_b32 v3, 7, v3")
        a("v_lshl_add_u32 v3, v4, 4, v3")
        a(f"v_add_u32 v{s.PWA}, {WB}, v3")
        a(f"v_add_u32 v3, {WB+256}, v3")
        a(f"v_xor_b32 v{s.PWB}, 16, v3")
        rs = s.roll_sched() if o["tw"] == "p" else []
        if rs: s.touch_addr_q(s.P_TQ)
        if not o["deq"]:
            for r in range(s.PK[0], s.PK[0]+8): a(f"v_mov_b32 v{r}, 0")
        s.mark("addr")
        a("s_barrier")
        s.mark("B-1")
        s.tread(0)
        s.lg.all()
        for t in range(-1, NS-1):
            s.vm.wait(("q", t+1))
            if t < 3: s.mark(f"q{t+1}")
            vms = pending if t == -1 else s.qload_ops(t + o["lq"])
            s.interleave(s.deq_ops(t+1), vms)
            for P, stg, wv in rs:
                if P == t:
                    def tq(stg=stg):
                        a(f"s_add_u32 s44, s57, {stg*64*14336}")
                        s.vm.op(f"buffer_load_dword v{s.P_TD}, v{s.P_TQ}, s[20:23], s44 offen {o['tqpol']}", "t")
                    s.only_wave(wv, tq)
            if t < 3: s.mark(f"deq{t+1}")
            s.lg.all()
            a("s_barrier")
        s.rep_tail("L_repdone2")
        if o["stamps"] == 2: s.write_marks(1)
        a("s_endpgm")

    def build(s):
        s.setup()
        s.consumer()
        s.producer()
        s.lab("L_end")
        s.a("s_endpgm")
        hdr = open("cdna_kernels/%s.s.ref" % NAME).read().split("; Override launch")[0]
        out = hdr + f"; @launch grid=(256,1,1) block=(512,1,1) lds={LDS}\n"
        out += f'.amdgcn_target "amdgcn-amd-amdhsa--gfx950"\n.text\n.globl {NAME}_kernel\n.p2align 8\n.type {NAME}_kernel,@function\n{NAME}_kernel:\n'
        out += "\n".join(s.L) + "\n"
        out += f""".section .rodata,"a"
.p2align 6
.amdhsa_kernel {NAME}_kernel
  .amdhsa_next_free_vgpr 256
  .amdhsa_next_free_sgpr 102
  .amdhsa_accum_offset 256
  .amdhsa_group_segment_fixed_size 0
  .amdhsa_kernarg_size 56
  .amdhsa_user_sgpr_count 2
  .amdhsa_user_sgpr_kernarg_segment_ptr 1
  .amdhsa_system_sgpr_workgroup_id_x 1
  .amdhsa_float_denorm_mode_32 3
.end_amdhsa_kernel
"""
        return out

if __name__ == "__main__":
    out = sys.argv[1]
    kw = {}
    for x in sys.argv[2:]:
        k, v = x.split("=")
        kw[k] = int(v) if v.lstrip("-").isdigit() else (v.replace("_", " ").replace("none", "") if k.endswith("pol") else v)
    open(out, "w").write(Gen(**kw).build())
```

```python
import sys

NAME = "standalone__weight_only_int_quip_2__prompt"
M, K, N = 2048, 1024, 3584
XB, QB, SB, OB = M*K*2, K*N*4, 16*N*2, M*N*2
NXS = 3
WB = NXS*32768
WSLOT = 14336
TB = WB + 2*WSLOT
TC = TB + 16*448
LDS = TC + 16*448
STG = 32768
NS = 16

DEF = dict(
    mfma=1, deq=1, store=1, xload=1, qload=1, reads=1, wwrite=1,
    stamps=0, dbg=0, prio=0, pprio=0, xcdmap=4, deqmode="fma",
    stpol="", xpol="", qpol="", tqpol="nt", txpol="",
    reps=1, fixx=0, fixq=0,
    tx=1,
    tq=1,
    tqd=0,
    epi=1,
    pro=2,
    lq=3,
    probe="", probeoff=0, probesrc="ws",
    tq0=2,
    tqs=2,
    txd=0,
    tw="p",
    xpos=1,
    xgap=3,
    xsplit=0,
)

class Ctr:
    def __init__(s, g, name, mx): s.g, s.name, s.mx, s.q = g, name, mx, []
    def op(s, text, tag): s.g.a(text); s.q.append(tag)
    def wait(s, tag):
        idx = [i for i, t in enumerate(s.q) if t == tag]
        if not idx: return
        n = len(s.q) - 1 - idx[-1]
        if n > s.mx: n = s.mx
        s.g.a(f"s_waitcnt {s.name}({n})")
        s.q = s.q[len(s.q)-n:] if n else []
    def all(s):
        s.g.a(f"s_waitcnt {s.name}(0)"); s.q = []

class WCtr:
    def __init__(s, g, name, mx): s.g, s.name, s.mx = g, name, mx; s.q = [[] for _ in range(4)]; s.cur = (0,1,2,3)
    def op(s, text, tag):
        s.g.a(text)
        for w in s.cur: s.q[w].append(tag)
    def wait(s, tag):
        ns = []
        for w in s.cur:
            idx = [i for i, t in enumerate(s.q[w]) if t == tag]
            if idx: ns.append(len(s.q[w]) - 1 - idx[-1])
        if not ns: return
        n = min(min(ns), s.mx)
        s.g.a(f"s_waitcnt {s.name}({n})")
        for w in s.cur: s.q[w] = s.q[w][len(s.q[w])-n:] if n else []
    def all(s):
        s.g.a(f"s_waitcnt {s.name}(0)")
        for w in s.cur: s.q[w] = []

class Gen:
    def __init__(s, **kw):
        s.o = dict(DEF)
        for k in kw: assert k in DEF, k
        s.o.update(kw)
        s.L = []
        s.nlab = 0
    def a(s, t): s.L.append("    " + t)
    def lab(s, t): s.L.append(t + ":")
    def newlab(s): s.nlab += 1; return f"L_{s.nlab}"

    def setup(s):
        a, o = s.a, s.o
        a("s_cmp_ge_u32 s2, 256")
        a("s_cbranch_scc1 L_end")
        a("s_load_dwordx8 s[4:11], s[0:1], 0")
        a("s_load_dwordx2 s[12:13], s[0:1], 32")
        if o["stamps"]:
            a("s_load_dwordx2 s[14:15], s[0:1], %d" % (40 if o["dbg"] else 48))
            a("s_memrealtime s[60:61]")
            a("s_memtime s[62:63]")
        a("v_lshrrev_b32 v1, 6, v0")
        a("v_and_b32 v0, 63, v0")
        xm = o["xcdmap"]
        a("s_and_b32 s36, s2, 7")
        a("s_lshr_b32 s37, s2, 3")
        if xm == 4:
            a("s_and_b32 s38, s37, 3")
            a("s_lshl_b32 s36, s36, 2")
            a("s_add_u32 s36, s36, s38")
            a("s_lshr_b32 s37, s37, 2")
        elif xm == 8:
            a("s_and_b32 s38, s37, 7")
            a("s_and_b32 s40, s36, 3")
            a("s_lshl_b32 s40, s40, 3")
            a("s_lshr_b32 s36, s36, 2")
            a("s_lshl_b32 s36, s36, 2")
            a("s_lshr_b32 s37, s37, 3")
            a("s_add_u32 s37, s37, s36")
            a("s_add_u32 s36, s40, s38")
        a("v_readfirstlane_b32 s39, v1")
        a("s_waitcnt lgkmcnt(0)")
        for base, src, size in ((16, 4, XB), (20, 6, QB), (32, 12, OB)):
            a(f"s_mov_b32 s{base}, s{src}")
            a(f"s_mov_b32 s{base+1}, s{src+1}")
            a(f"s_mov_b32 s{base+2}, {size}")
            a(f"s_mov_b32 s{base+3}, 0x20000")
        if o["probe"]:
            pol = o["probe"].replace("plain", "")
            if o["probesrc"] == "ws":
                a("s_load_dwordx2 s[40:41], s[0:1], 48")
                a("s_waitcnt lgkmcnt(0)")
                a("s_mov_b32 s24, s40"); a("s_mov_b32 s25, s41"); a(f"s_mov_b32 s26, {256<<20}"); a("s_mov_b32 s27, 0x20000")
                n = 28
            else:
                a("s_mov_b32 s24, s6"); a("s_mov_b32 s25, s7"); a(f"s_mov_b32 s26, {QB}"); a("s_mov_b32 s27, 0x20000")
                n = 7
            a("s_lshl_b32 s42, s2, 3")
            a("s_add_u32 s42, s42, s39")
            a(f"s_mul_i32 s42, s42, {n*1024}")
            a(f"s_add_u32 s42, s42, {o['probeoff']<<20}")
            a("v_lshlrev_b32 v1, 4, v0")
            for i in range(n):
                a(f"buffer_load_dwordx4 v[{128+4*i}:{131+4*i}], v1, s[24:27], s42 offen {pol}")
                a("s_add_u32 s42, s42, 1024")
            a("s_waitcnt vmcnt(0)")
            a("s_barrier")
        if o["reps"] > 1:
            a(f"s_mov_b32 s52, {o['reps']}")
            a("s_mov_b32 s53, s39")
            s.lab("L_rep")
            a("s_mov_b32 s39, s53")
            a("v_mbcnt_lo_u32_b32 v0, -1, 0")
            a("v_mbcnt_hi_u32_b32 v0, -1, v0")
            a("s_barrier")
            if o["stamps"]:
                a("s_memrealtime s[60:61]")
                a("s_memtime s[62:63]")
                a("s_waitcnt lgkmcnt(0)")
        a("s_cmp_ge_u32 s39, 4")
        a("s_cbranch_scc1 L_prod")

    def mark(s, name):
        if s.o["stamps"] != 2: return
        i = len(s.marks); assert i < 16
        s.marks.append(name)
        s.a(f"s_memtime s[{64+2*i}:{65+2*i}]")

    def write_marks(s, role):
        a = s.a
        lab = s.newlab()
        a("s_waitcnt vmcnt(0)")
        a("s_memtime s[98:99]")
        a("s_memrealtime s[100:101]")
        a("s_waitcnt lgkmcnt(0)")
        a("s_cmp_lg_u32 s39, 0")
        a(f"s_cbranch_scc1 {lab}")
        a("s_mov_b32 s16, s14"); a("s_mov_b32 s17, s15"); a("s_mov_b32 s18, 0x100000"); a("s_mov_b32 s19, 0x20000")
        a("s_lshl_b32 s45, s2, 8")
        a(f"s_add_u32 s45, s45, {role*128}")
        a("v_mov_b32 v1, s45")
        vals = [60, 62] + [64+2*t for t in range(len(s.marks))] + [98, 100]
        for i, r in enumerate(vals):
            a(f"v_mov_b32 v2, s{r}")
            a(f"buffer_store_dword v2, v1, s[16:19], 0 offen offset:{4*i}")
        a("s_waitcnt vmcnt(0)")
        s.lab(lab)
        print("marks", role, s.marks + ["end"], file=sys.stderr)

    def rep_tail(s, lab):
        a, o = s.a, s.o
        if o["reps"] > 1:
            a("s_waitcnt vmcnt(0) lgkmcnt(0)")
            a("s_sub_u32 s52, s52, 1")
            a("s_cmp_lg_u32 s52, 0")
            a(f"s_cbranch_scc0 {lab}")
            a("s_branch L_rep")
            s.lab(lab)

    ACC = 128
    XF = (8, 24)
    WF = (40, 68)
    VX = {(0,0):96, (1,0):97, (0,1):98, (1,1):99}
    CX = 112
    VW = {(0,0):100, (1,0):101, (0,1):102, (1,1):103}
    V_SW, V_SW6, V_RB, V_GO = 104, 105, 106, 107
    V_TT, V_TQ, V_TX, V_TD = 108, 109, 110, 111
    RB = (112, 240)
    CT = (8, 40)
    def acc(s, j, mt): b = s.ACC + 4*(j*4+mt); return f"v[{b}:{b+3}]"
    def accr(s, j, mt, r): return f"v{s.ACC + 4*(j*4+mt) + r}"

    def c_reads(s, step):
        t, h, b = step // 2, step % 2, step % 2
        xs, ws = t % NXS, t % 2
        xr = [f"ds_read_b128 v[{s.XF[b]+4*mt}:{s.XF[b]+4*mt+3}], v{s.VX[(h, xs>>1)]} offset:{(xs&1)*32768 + mt*2048}" for mt in range(4)]
        wr = [f"ds_read_b128 v[{s.WF[b]+4*j}:{s.WF[b]+4*j+3}], v{s.VW[(h, j&1)]} offset:{ws*WSLOT + j*2048}" for j in range(7)]
        return [wr[0]] + xr + wr[1:]

    def mfma(s, step, j, mt):
        if not s.o["mfma"]: return
        b = step % 2
        c = "0" if step == 0 else s.acc(j, mt)
        s.a(f"v_mfma_f32_16x16x32_bf16 {s.acc(j,mt)}, v[{s.WF[b]+4*j}:{s.WF[b]+4*j+3}], v[{s.XF[b]+4*mt}:{s.XF[b]+4*mt+3}], {c}")

    def c_step(s, step, reads, extra=None):
        ri, n = 0, 0
        for j in range(7):
            for mt in range(4):
                s.mfma(step, j, mt)
                n += 1
                if ri < len(reads) and n >= 2:
                    if s.o["reads"]: s.lg.op(reads[ri], "r")
                    ri += 1
                if extra and n in extra: extra[n]()

    def only_wave(s, w, fn, cmp="s_cmp_lg_u32"):
        lab = s.newlab()
        s.a(f"{cmp} s39, {w}")
        s.a(f"s_cbranch_scc1 {lab}")
        old = s.vm.cur
        s.vm.cur = {"s_cmp_lg_u32": (w,), "s_cmp_ge_u32": tuple(range(w)), "s_cmp_lt_u32": tuple(range(w, 4))}[cmp]
        fn()
        s.vm.cur = old
        s.lab(lab)

    def touch_q(s, st):
        s.a(f"s_add_u32 s44, s57, {st*64*14336}")
        s.vm.op(f"buffer_load_dword v{s.V_TD}, v{s.V_TQ}, s[20:23], s44 offen {s.o['tqpol']}", "t")
    def touch_x(s, half):
        s.a(f"s_add_u32 s44, s58, {half*1024}")
        s.vm.op(f"buffer_load_dword v{s.V_TD}, v{s.V_TX}, s[16:19], s44 offen {s.o['txpol']}", "t")

    def xdma_ops(s, t):
        o = s.o
        if not o["xload"] or t >= NS: return []
        slot = t % NXS
        kk = (t % o["fixx"]) if o["fixx"] else t
        ops = []
        for i in range(8):
            def f(i=i):
                if i == 0: s.a(f"s_movk_i32 s46, {kk*128}")
                s.vm.op(f"buffer_load_dwordx4 v{s.CX+i}, s[16:19], s46 offen offset:{(i&3)*1024} {o['xpol']} lds", ("x", t))
            def g(i=i):
                s.a(f"s_add_u32 m0, s47, {slot*32768 + (i>>2)*4096}")
            ops.append((g if i % 4 == 0 else None, f))
        return ops

    def touch_addr_q(s, vt):
        a = s.a
        a("v_bfe_u32 v4, v0, 2, 3")
        a("v_mul_u32_u24 v4, 14336, v4")
        a("v_and_b32 v5, 3, v0")
        a("v_lshl_add_u32 v4, v5, 7, v4")
        a("v_lshrrev_b32 v5, 5, v0")
        a("v_mul_u32_u24 v5, 64*14336, v5")
        a(f"v_add_u32 v{vt}, v4, v5")
        a("s_mul_i32 s57, s37, 8*14336")
        a("s_mul_i32 s41, s36, 448")
        a("s_and_b32 s41, s41, 0xffffff80")
        a("s_add_u32 s57, s57, s41")

    def roll_sched(s):
        o = s.o
        if o["tq"] != 1: return []
        first = o["tqs"] + 2*o["tq0"]
        return [(k*2 + o["tqd"], st, k & 3) for k, st in enumerate(range(first, NS, 2))]

    def consumer(s):
        a, o = s.a, s.o
        s.vm = WCtr(s, "vmcnt", 63); s.lg = Ctr(s, "lgkmcnt", 15)
        s.marks = []
        s.mark("role")
        a("v_lshrrev_b32 v3, 3, v0")
        a("s_lshl_b32 s42, s37, 8")
        a("s_lshl_b32 s43, s39, 6")
        a("s_add_u32 s42, s42, s43")
        a("v_add_u32 v3, s42, v3")
        a("v_lshlrev_b32 v3, 11, v3")
        a("v_and_b32 v4, 7, v0")
        a("v_lshrrev_b32 v5, 4, v0")
        a("v_xor_b32 v4, v4, v5")
        a(f"v_lshl_add_u32 v{s.CX}, v4, 4, v3")
        a(f"v_xor_b32 v4, 64, v{s.CX}")
        a("s_lshl_b32 s47, s39, 13")
        a("s_mov_b32 s24, s8"); a("s_mov_b32 s25, s9"); a(f"s_mov_b32 s26, {SB}"); a("s_mov_b32 s27, 0x20000")
        a("s_mov_b32 s28, s10"); a("s_mov_b32 s29, s11"); a(f"s_mov_b32 s30, {SB}"); a("s_mov_b32 s31, 0x20000")
        a("v_and_b32 v1, 31, v0")
        a("v_min_u32 v1, 27, v1")
        a("v_lshrrev_b32 v2, 5, v0")
        a("v_mul_u32_u24 v5, 7168, v2")
        a("v_lshl_add_u32 v5, v1, 3, v5")
        a("s_mul_i32 s40, s39, 4*7168")
        a("s_mul_i32 s41, s36, 224")
        a("s_add_u32 s40, s40, s41")
        a("s_add_u32 s41, s40, 2*7168")
        s.vm.op("buffer_load_dwordx2 v[8:9], v5, s[24:27], s40 offen", "tab")
        s.vm.op("buffer_load_dwordx2 v[10:11], v5, s[28:31], s40 offen", "tab")
        s.vm.op("buffer_load_dwordx2 v[12:13], v5, s[24:27], s41 offen", "tab")
        s.vm.op("buffer_load_dwordx2 v[14:15], v5, s[28:31], s41 offen", "tab")
        x0 = s.xdma_ops(0)
        for i in range(8):
            if i:
                src = "v4" if i & 1 else f"v{s.CX}"
                a(f"v_add_u32 v{s.CX+i}, {i*16384 - (i&3)*1024}, {src}")
            if x0:
                if x0[i][0]: x0[i][0](); a("s_nop 0")
                x0[i][1]()
        s.mark("x0iss")
        a("v_mul_u32_u24 v6, 448, v2")
        a("v_lshl_add_u32 v6, v1, 4, v6")
        a("s_mul_i32 s40, s39, 4*448")
        a(f"s_add_u32 s40, s40, {TB}")
        a("v_add_u32 v6, s40, v6")
        if o["tx"]:
            a("v_lshrrev_b32 v1, 3, v0")
            a("v_lshlrev_b32 v1, 11, v1")
            a("v_and_b32 v2, 7, v0")
            a(f"v_lshl_add_u32 v{s.V_TX}, v2, 7, v1")
            a("s_lshl_b32 s40, s37, 8")
            a("s_lshl_b32 s41, s36, 3")
            a("s_add_u32 s40, s40, s41")
            a("s_lshl_b32 s58, s40, 11")
            def xt():
                s.only_wave(0, lambda: s.touch_x(0))
                if o["tx"] == 1: s.only_wave(3, lambda: s.touch_x(1))
            if o["txd"] == 0: xt()
        if o["tq"]:
            s.touch_addr_q(s.V_TQ)
            last = NS if o["tq"] == 2 else o["tqs"] + 2*o["tq0"]
            for k, st in enumerate(range(o["tqs"], last, 2)):
                s.only_wave((1, 2, 0, 3)[k & 3], lambda: s.touch_q(st))
        for g, f in s.xdma_ops(1):
            if g: g(); a("s_nop 0")
            f()
        if o["prio"]: a(f"s_setprio {o['prio']}")
        a("v_and_b32 v1, 15, v0")
        a("v_lshrrev_b32 v2, 4, v0")
        a("v_lshrrev_b32 v3, 1, v1")
        a("v_xor_b32 v3, v2, v3")
        a("v_lshlrev_b32 v3, 4, v3")
        a("v_lshl_add_u32 v3, v1, 7, v3")
        a("s_lshl_b32 s40, s39, 13")
        a(f"v_add_u32 v{s.VX[(0,0)]}, s40, v3")
        a(f"v_xor_b32 v{s.VX[(1,0)]}, 64, v{s.VX[(0,0)]}")
        a(f"v_add_u32 v{s.VX[(0,1)]}, 0x10000, v{s.VX[(0,0)]}")
        a(f"v_add_u32 v{s.VX[(1,1)]}, 0x10000, v{s.VX[(1,0)]}")
        a(f"v_add_u32 v{s.VW[(0,0)]}, {WB}, v3")
        a(f"v_xor_b32 v{s.VW[(1,0)]}, 64, v{s.VW[(0,0)]}")
        a(f"v_xor_b32 v{s.VW[(0,1)]}, 16, v{s.VW[(0,0)]}")
        a(f"v_xor_b32 v{s.VW[(1,1)]}, 16, v{s.VW[(1,0)]}")
        a("s_mul_i32 s41, s39, 15360")
        a(f"s_add_u32 s41, s41, {STG}")
        a("v_mul_u32_u24 v4, 240, v1")
        a("v_add_u32 v4, s41, v4")
        a(f"v_lshl_add_u32 v{s.V_SW}, v2, 4, v4")
        a(f"v_lshl_add_u32 v{s.V_SW6}, v2, 3, v4")
        a("v_min_u32 v4, 55, v0")
        a("v_mul_u32_u24 v5, 37, v4")
        a("v_lshrrev_b32 v5, 9, v5")
        a("v_mul_u32_u24 v3, 14, v5")
        a("v_sub_u32 v3, v4, v3")
        a("v_mul_u32_u24 v7, 240, v5")
        a("v_lshl_add_u32 v7, v3, 4, v7")
        a(f"v_add_u32 v{s.V_RB}, s41, v7")
        a("s_lshl_b32 s42, s37, 8")
        a("s_lshl_b32 s43, s39, 6")
        a("s_add_u32 s42, s42, s43")
        a("s_mul_i32 s42, s42, 7168")
        a("s_mul_i32 s43, s36, 224")
        a("s_add_u32 s42, s42, s43")
        a("v_mul_u32_u24 v7, 7168, v5")
        a("v_lshl_add_u32 v7, v3, 4, v7")
        a(f"v_add_u32 v{s.V_GO}, s42, v7")
        s.mark("addr")
        s.vm.wait("tab")
        s.mark("tab")
        for hb in range(2):
            r = 8 + 4*hb
            S, Z = 16 + 8*hb, 32
            a(f"v_lshlrev_b32 v{S}, 16, v{r}"); a(f"v_and_b32 v{S+1}, 0xffff0000, v{r}")
            a(f"v_lshlrev_b32 v{S+2}, 16, v{r+1}"); a(f"v_and_b32 v{S+3}, 0xffff0000, v{r+1}")
            a(f"v_lshlrev_b32 v{Z}, 16, v{r+2}"); a(f"v_and_b32 v{Z+1}, 0xffff0000, v{r+2}")
            a(f"v_lshlrev_b32 v{Z+2}, 16, v{r+3}"); a(f"v_and_b32 v{Z+3}, 0xffff0000, v{r+3}")
            for e in range(4): a(f"v_mul_f32_e64 v{S+4+e}, -v{Z+e}, v{S+e}")
            if o["deqmode"] == "mix":
                for e in range(4): a(f"v_mul_f32 v{S+e}, 0x4b800000, v{S+e}")
            s.lg.op(f"ds_write_b128 v6, v[{S}:{S+3}] offset:{hb*896}", "tw")
            s.lg.op(f"ds_write_b128 v6, v[{S+4}:{S+7}] offset:{hb*896 + 16*448}", "tw")
        s.lg.all()
        a("s_barrier")
        s.mark("B-1")
        if o["tx"] and o["txd"] == 1: xt()
        if not o["reads"]:
            for r in range(8, 96): a(f"v_mov_b32 v{r}, 0")
        s.vm.wait(("x", 0))
        s.mark("x0")
        a("s_barrier")
        if o["stamps"] == 1: a("s_memtime s[64:65]")
        s.mark("B0")
        if o["reads"]:
            for r in s.c_reads(0): s.lg.op(r, "r")
        if o["tx"] and o["txd"] == 2: xt()
        nsteps = 2*NS
        ex = {}
        def add(step, n, fn):
            d = ex.setdefault(step, {})
            old = d.get(n)
            d[n] = fn if old is None else (lambda old=old, fn=fn: (old(), fn()))
        for t in range(NS):
            ops = s.xdma_ops(t+2)
            for i, (g, f) in enumerate(ops):
                if t == 0: st, n = 0, o["xpos"] + 1 + i*o["xgap"]
                elif o["xsplit"]: st, n = 2*t - 1 + i // 4, o["xpos"] + 1 + (i % 4)*o["xgap"]*2
                else: st, n = 2*t - 1, o["xpos"] + 1 + i*o["xgap"]
                assert n <= 28
                if g: add(st, n - 1, g)
                add(st, n, f)
        if o["tw"] == "c":
            for P, stg, wv in s.roll_sched():
                add(2*P - 1, 28, (lambda stg=stg, wv=wv: s.only_wave(wv, lambda: s.touch_q(stg))))
        if o["tx"] == 2:
            add(1, 28, lambda: s.only_wave(3, lambda: s.touch_x(1)))
        for step in range(nsteps):
            if step % 2 == 1 and step < nsteps - 1:
                t = (step+1)//2
                s.lg.all()
                s.vm.wait(("x", t))
                a("s_barrier")
                if o["stamps"] == 1: a(f"s_memtime s[{64+2*t}:{65+2*t}]")
                if t in (1, 2, 3, 15): s.mark(f"B{t}")
            else:
                s.lg.all()
            if step == nsteps - 1 and o["epi"] and o["store"]:
                s.last_step(step)
            else:
                reads = s.c_reads(step+1) if step + 1 < nsteps else []
                s.c_step(step, reads, ex.get(step))
        if o["stamps"] == 1: a("s_memtime s[96:97]")
        s.mark("mainend")
        if not (o["epi"] and o["store"]): s.epilogue_simple()
        s.rep_tail("L_repdone")
        if o["stamps"] == 1: s.write_stamps()
        if o["stamps"] == 2: s.write_marks(0)
        a("s_endpgm")

    def cvt_ops(s, mt):
        t = s.CT[mt & 1]
        ops = []
        for u in range(3):
            d = t + 4*u
            for q, (jj, r) in enumerate(((0,0),(0,2),(1,0),(1,2))):
                ops.append(lambda d=d, q=q, jj=jj, r=r, u=u: s.a(f"v_cvt_pk_bf16_f32 v{d+q}, {s.accr(2*u+jj,mt,r)}, {s.accr(2*u+jj,mt,r+1)}"))
            ops.append(lambda d=d, u=u: s.lg.op(f"ds_write_b128 v{s.V_SW}, v[{d}:{d+3}] offset:{mt*3840 + u*64}", ("w", mt)))
        d = t + 12
        ops.append(lambda: s.a(f"v_cvt_pk_bf16_f32 v{d}, {s.accr(6,mt,0)}, {s.accr(6,mt,1)}"))
        ops.append(lambda: s.a(f"v_cvt_pk_bf16_f32 v{d+1}, {s.accr(6,mt,2)}, {s.accr(6,mt,3)}"))
        ops.append(lambda: s.lg.op(f"ds_write_b64 v{s.V_SW6}, v[{d}:{d+1}] offset:{mt*3840 + 192}", ("w", mt)))
        return ops
    def rb_ops(s, mt):
        R = s.RB[mt & 1]
        ops = [lambda: s.lg.wait(("w", mt))]
        for i in range(4):
            ops.append(lambda i=i: s.lg.op(f"ds_read_b128 v[{R+4*i}:{R+4*i+3}], v{s.V_RB} offset:{960*(4*mt+i)}", ("rb", mt, i)))
        return ops
    def st_ops(s, mt):
        R = s.RB[mt & 1]
        ops = []
        for i in range(4):
            def f(i=i):
                s.a(f"s_mov_b32 s44, {28672*(4*mt+i)}")
                s.lg.wait(("rb", mt, i))
                s.vm.op(f"buffer_store_dwordx4 v[{R+4*i}:{R+4*i+3}], v{s.V_GO}, s[32:35], s44 offen {s.o['stpol']}", "st")
            ops.append(f)
        return ops

    def last_step(s, step):
        a, o = s.a, s.o
        if not o["mfma"]:
            for r in range(128, 240): a(f"v_mov_b32 v{r}, 0")
        def group(mt, ops, start):
            k = 0
            for j in range(7):
                s.mfma(step, j, mt)
                if j + 1 >= start:
                    rem = 7 - j
                    n = -(-(len(ops) - k) // rem)
                    for _ in range(n):
                        if k < len(ops): ops[k](); k += 1
            assert k == len(ops)
        group(0, [], 1)
        group(1, s.cvt_ops(0), 2)
        c1 = s.cvt_ops(1)
        group(2, c1[:5] + s.rb_ops(0) + c1[5:], 2)
        c2 = s.cvt_ops(2)
        st0 = s.st_ops(0)
        group(3, c2[:5] + s.rb_ops(1) + c2[5:10] + st0[:2] + c2[10:] + st0[2:], 2)
        if o["stamps"]: a("s_memtime s[94:95]") if False else None
        c3 = s.cvt_ops(3)
        st1 = s.st_ops(1)
        a("s_nop 0")
        seq = s.rb_ops(2) + c3[:5] + st1[:2] + c3[5:10] + st1[2:] + c3[10:]
        for f in seq: f()
        st2 = s.st_ops(2)
        for f in s.rb_ops(3): f()
        for f in st2: f()
        for f in s.st_ops(3): f()

    def epilogue_simple(s):
        a, o = s.a, s.o
        if not o["store"]: return
        if not o["mfma"]:
            for r in range(128, 240): a(f"v_mov_b32 v{r}, 0")
        a("s_nop 7"); a("s_nop 1")
        for mt in range(4):
            for f in s.cvt_ops(mt): f()
            for f in s.rb_ops(mt): f()
            for f in s.st_ops(mt): f()

    def write_stamps(s):
        a, o = s.a, s.o
        a("s_waitcnt vmcnt(0)")
        a("s_memtime s[98:99]")
        a("s_memrealtime s[100:101]")
        a("s_waitcnt lgkmcnt(0)")
        a("s_cmp_lg_u32 s39, 0")
        a("s_cbranch_scc1 L_nostamp")
        a("s_mov_b32 s16, s14")
        a("s_mov_b32 s17, s15")
        a("s_mov_b32 s18, %d" % (256 if o["dbg"] else 0x100000))
        a("s_mov_b32 s19, 0x20000")
        if o["dbg"]:
            a(f"s_cmp_lg_u32 s2, {o['dbg']-1}")
            a("s_cbranch_scc1 L_nostamp")
            a("v_mov_b32 v1, 0")
            for i in range(16):
                r = [64, 66, 68, 70, 72, 74, 76, 78, 80, 84, 88, 92, 94, 96, 98][i] if i < 15 else None
                if r is None: a("s_sub_u32 s45, s100, s60")
                else: a(f"s_sub_u32 s45, s{r}, s62")
                a("v_mov_b32 v2, s45")
                a(f"buffer_store_dword v2, v1, s[16:19], 0 offen offset:{4*i}")
        else:
            a("s_lshl_b32 s45, s2, 8")
            a("v_mov_b32 v1, s45")
            vals = [60, 62] + [64+2*t for t in range(16)] + [96, 98, 100]
            for i, r in enumerate(vals):
                a(f"v_mov_b32 v2, s{r}")
                a(f"buffer_store_dword v2, v1, s[16:19], 0 offen offset:{4*i}")
            a("s_getreg_b32 s45, hwreg(HW_REG_XCC_ID)")
            a("v_mov_b32 v2, s45")
            a(f"buffer_store_dword v2, v1, s[16:19], 0 offen offset:{4*len(vals)}")
        a("s_waitcnt vmcnt(0)")
        s.lab("L_nostamp")

    PQ = 16
    PT = 24
    PWA, PWB = 25, 26
    P_TQ, P_TD = 8, 9
    SF = 28
    PK = (44, 48)
    TT = (52, 60)
    QS = (128, 160, 192, 224)

    def qload_ops(s, t):
        o = s.o
        if not o["qload"] or t >= NS: return []
        kk = (t % o["fixq"]) if o["fixq"] else t
        ops = []
        for i in range(8):
            r = s.QS[t % o["lq"]] + 4*i
            pre = [f"s_mov_b32 s48, {kk*64*14336}"] if i == 0 else []
            ops.append((pre, f"buffer_load_dwordx4 v[{r}:{r+3}], v{s.PQ+i}, s[20:23], s48 offen {o['qpol']}", ("q", t)))
        return ops
    def emit_vm(s, op):
        pre, text, tag = op
        for p in pre: s.a(p)
        s.vm.op(text, tag)

    def tread(s, g):
        if g >= NS: return
        s.lg.op(f"ds_read_b128 v[{s.SF}:{s.SF+3}], v{s.PT} offset:{g*448}", "tr")
        s.lg.op(f"ds_read_b128 v[{s.SF+4}:{s.SF+7}], v{s.PT} offset:{g*448 + 16*448}", "tr")

    def deq_ops(s, t):
        o = s.o
        A = lambda txt: (lambda: s.a(txt))
        ops = []
        q = s.QS[t % o["lq"]]
        ws = (t % 2) * WSLOT
        for e in range(4):
            T, P = s.TT[e & 1], s.PK[e & 1]
            if o["deq"]:
                if o["deqmode"] == "fma":
                    for i in range(8): ops.append(A(f"v_cvt_f32_i32 v{T+i}, v{q+4*i+e}"))
                    for i in range(8): ops.append(A(f"v_fma_f32 v{T+i}, v{T+i}, v{s.SF+e}, v{s.SF+4+e}"))
                else:
                    for i in range(8): ops.append(A(f"v_fma_mix_f32 v{T+i}, v{q+4*i+e}, v{s.SF+e}, v{s.SF+4+e} op_sel_hi:[1,0,0]"))
                if e == 3: ops.append(lambda: s.tread(t+1))
                for i in range(4): ops.append(A(f"v_cvt_pk_bf16_f32 v{P+i}, v{T+2*i}, v{T+2*i+1}"))
            if o["wwrite"]:
                ad = s.PWA if e < 2 else s.PWB
                ops.append(lambda ad=ad, P=P, e=e: s.lg.op(f"ds_write_b128 v{ad}, v[{P}:{P+3}] offset:{ws + (e&1)*128}", "w"))
        return ops

    def interleave(s, ops, vms, frac=0.75):
        nv = len(vms); n = max(int(len(ops)*frac), 1)
        k = 0
        for i, f in enumerate(ops):
            while k < nv and k * n <= i * nv:
                s.emit_vm(vms[k]); k += 1
            f()
        while k < nv:
            s.emit_vm(vms[k]); k += 1

    def producer(s):
        a, o = s.a, s.o
        s.vm = WCtr(s, "vmcnt", 63); s.lg = Ctr(s, "lgkmcnt", 15)
        s.lab("L_prod")
        s.marks = []
        s.mark("role")
        a("s_sub_u32 s39, s39, 4")
        if o["pprio"]: a(f"s_setprio {o['pprio']}")
        a("v_and_b32 v1, 31, v0")
        a("v_min_u32 v1, 27, v1")
        a("v_lshrrev_b32 v2, 5, v0")
        a("s_lshl_b32 s40, s39, 1")
        a("v_add_u32 v2, s40, v2")
        a("s_mov_b32 s41, 114688")
        a("v_mul_lo_u32 v3, v2, s41")
        a("v_lshl_add_u32 v3, v1, 4, v3")
        a("s_mul_i32 s42, s36, 448")
        a(f"v_add_u32 v{s.PQ}, s42, v3")
        q0 = s.qload_ops(0)
        for i in range(8):
            if i: a(f"v_add_u32 v{s.PQ+i}, {14336*i}, v{s.PQ}")
            if q0: s.emit_vm(q0[i])
        s.mark("q0iss")
        pending = []
        for t in range(1, o["lq"]):
            pending += s.qload_ops(t)
        npre = 8 * (o["pro"] - 1)
        for op in pending[:npre]: s.emit_vm(op)
        pending = pending[npre:]
        a("v_lshrrev_b32 v3, 3, v1")
        a("v_lshlrev_b32 v3, 5, v3")
        a("v_and_b32 v4, 1, v1")
        a("v_lshl_add_u32 v3, v4, 4, v3")
        a("v_bfe_u32 v4, v1, 1, 2")
        a("v_lshl_add_u32 v3, v4, 2, v3")
        a("v_lshlrev_b32 v4, 2, v1")
        a("v_cmp_le_u32 vcc, 24, v1")
        a(f"v_lshlrev_b32 v{s.PT}, 4, v1")
        a(f"v_add_u32 v{s.PT}, {TB}, v{s.PT}")
        a("v_cndmask_b32 v3, v3, v4, vcc")
        a("v_bfe_u32 v4, v3, 1, 3")
        a("v_bfe_u32 v5, v3, 4, 1")
        a("v_xor_b32 v4, v4, v5")
        a("v_xor_b32 v4, v4, v2")
        a("v_lshlrev_b32 v3, 7, v3")
        a("v_lshl_add_u32 v3, v4, 4, v3")
        a(f"v_add_u32 v{s.PWA}, {WB}, v3")
        a(f"v_add_u32 v3, {WB+256}, v3")
        a(f"v_xor_b32 v{s.PWB}, 16, v3")
        rs = s.roll_sched() if o["tw"] == "p" else []
        if rs: s.touch_addr_q(s.P_TQ)
        if not o["deq"]:
            for r in range(s.PK[0], s.PK[0]+8): a(f"v_mov_b32 v{r}, 0")
        s.mark("addr")
        a("s_barrier")
        s.mark("B-1")
        s.tread(0)
        s.lg.all()
        for t in range(-1, NS-1):
            s.vm.wait(("q", t+1))
            if t < 3: s.mark(f"q{t+1}")
            vms = pending if t == -1 else s.qload_ops(t + o["lq"])
            s.interleave(s.deq_ops(t+1), vms)
            for P, stg, wv in rs:
                if P == t:
                    def tq(stg=stg):
                        a(f"s_add_u32 s44, s57, {stg*64*14336}")
                        s.vm.op(f"buffer_load_dword v{s.P_TD}, v{s.P_TQ}, s[20:23], s44 offen {o['tqpol']}", "t")
                    s.only_wave(wv, tq)
            if t < 3: s.mark(f"deq{t+1}")
            s.lg.all()
            a("s_barrier")
        s.rep_tail("L_repdone2")
        if o["stamps"] == 2: s.write_marks(1)
        a("s_endpgm")

    def build(s):
        s.setup()
        s.consumer()
        s.producer()
        s.lab("L_end")
        s.a("s_endpgm")
        hdr = open("cdna_kernels/%s.s.ref" % NAME).read().split("; Override launch")[0]
        out = hdr + f"; @launch grid=(256,1,1) block=(512,1,1) lds={LDS}\n"
        out += f'.amdgcn_target "amdgcn-amd-amdhsa--gfx950"\n.text\n.globl {NAME}_kernel\n.p2align 8\n.type {NAME}_kernel,@function\n{NAME}_kernel:\n'
        out += "\n".join(s.L) + "\n"
        out += f""".section .rodata,"a"
.p2align 6
.amdhsa_kernel {NAME}_kernel
  .amdhsa_next_free_vgpr 256
  .amdhsa_next_free_sgpr 102
  .amdhsa_accum_offset 256
  .amdhsa_group_segment_fixed_size 0
  .amdhsa_kernarg_size 56
  .amdhsa_user_sgpr_count 2
  .amdhsa_user_sgpr_kernarg_segment_ptr 1
  .amdhsa_system_sgpr_workgroup_id_x 1
  .amdhsa_float_denorm_mode_32 3
.end_amdhsa_kernel
"""
        return out

if __name__ == "__main__":
    out = sys.argv[1]
    kw = {}
    for x in sys.argv[2:]:
        k, v = x.split("=")
        kw[k] = int(v) if v.lstrip("-").isdigit() else (v.replace("_", " ").replace("none", "") if k.endswith("pol") else v)
    open(out, "w").write(Gen(**kw).build())
```

```python
import sys

NAME = "standalone__weight_only_int_quip_2__prompt"
M, K, N = 2048, 1024, 3584
XB, QB, SB, OB = M*K*2, K*N*4, 16*N*2, M*N*2
NS = 16
XSLOT = 32768
WB = 3*XSLOT
WSLOT = 14336
DUMMY = WB + 3*WSLOT
LDS = DUMMY + 4096
STG = 32768
FOFF = 32*16*WSLOT
EOFF = FOFF + 65536
WSB = EOFF + 4096
STAMP = 16 << 20
TAGC = 0xe995
SPIN = 4096

DEF = dict(
    mfma=1, store=1, reads=1, stamps=0, prio=1, hprio=0, xcdmap=8,
    stpol="", xpol="", qpol="", wpol="sc1", pubpol="sc1", txpol="",
    touch=1, tsched="1,3,5", epi=1, order="j", fallback=1, forcefb=0,
    wfirst=1, nosync=0, bord=1, nopub=0, pubpos=0, hq=0, tfull=0, fa=0, vp=1, mk=0, poll0=0, poll3=0, quota="16,12,12,12,12,12,12,12,12,12,12,12,12,12,12", x0pos=3, x2pos=0, x1pos=0, tpre=1, cx=1, pubB="1,2,3,4", flagB=5, deqfirst=1, spoll=1, bpub=0, xrot=0, ilv=0, delay=0, fixx=0, fixw=0, hord=2, xo=0, tl2=0, tl2d=3,
)

class Ctr:
    def __init__(s, g, name, mx): s.g, s.name, s.mx, s.q = g, name, mx, []
    def op(s, text, tag): s.g.a(text); s.q.append(tag)
    def wait(s, tag):
        idx = [i for i, t in enumerate(s.q) if t == tag]
        if not idx: return
        n = min(len(s.q) - 1 - idx[-1], s.mx)
        s.g.a(f"s_waitcnt {s.name}({n})")
        s.q = s.q[len(s.q)-n:] if n else []
    def all(s):
        s.g.a(f"s_waitcnt {s.name}(0)"); s.q = []

class WCtr:
    def __init__(s, g, name, mx): s.g, s.name, s.mx = g, name, mx; s.q = [[] for _ in range(4)]; s.cur = (0,1,2,3)
    def op(s, text, tag):
        s.g.a(text)
        for w in s.cur: s.q[w].append(tag)
    def count(s, tag):
        ns = []
        for w in s.cur:
            idx = [i for i, t in enumerate(s.q[w]) if t == tag]
            if idx: ns.append(len(s.q[w]) - 1 - idx[-1])
        return min(min(ns), s.mx) if ns else None
    def wait(s, tag):
        n = s.count(tag)
        if n is None: return
        s.g.a(f"s_waitcnt {s.name}({n})")
        for w in s.cur: s.q[w] = s.q[w][len(s.q[w])-n:] if n else []
    def all(s):
        s.g.a(f"s_waitcnt {s.name}(0)")
        for w in s.cur: s.q[w] = []

class Gen:
    def __init__(s, **kw):
        s.o = dict(DEF)
        for k in kw: assert k in DEF, k
        s.o.update(kw)
        s.L = []
        s.nlab = 0
        s.m0x = None
    def a(s, t): s.L.append("    " + t)
    def lab(s, t): s.L.append(t + ":")
    def newlab(s): s.nlab += 1; return f"L_{s.nlab}"
    def srd(s, base, src, size):
        s.a(f"s_mov_b32 s{base}, s{src}"); s.a(f"s_mov_b32 s{base+1}, s{src+1}")
        s.a(f"s_mov_b32 s{base+2}, {size}"); s.a(f"s_mov_b32 s{base+3}, 0x20000")
    def only_wave(s, w, fn, cmp="s_cmp_lg_u32"):
        lab = s.newlab()
        s.a(f"{cmp} s39, {w}")
        s.a(f"s_cbranch_scc1 {lab}")
        old = s.vm.cur
        s.vm.cur = {"s_cmp_lg_u32": (w,), "s_cmp_ge_u32": tuple(range(w)), "s_cmp_lt_u32": tuple(range(w, 4))}[cmp]
        fn()
        s.vm.cur = old
        s.lab(lab)

    def mark(s, name):
        if not s.o["stamps"]: return
        i = len(s.marks); assert i < len(s.mregs), name
        if s.o["mk"] == 1 and s.role == 1 and name in ("role", "ord", "qiss", "qB", "B3", "B4"): return
        if s.o["mk"] == 0 and name.startswith("p1"): return
        s.marks.append(name)
        s.a(f"s_memtime s[{s.mregs[i]}:{s.mregs[i]+1}]")
    def write_marks(s, role):
        if not s.o["stamps"]: return
        a = s.a
        lab = s.newlab()
        a("s_waitcnt vmcnt(0)")
        a("s_memtime s[98:99]")
        a("s_memrealtime s[100:101]")
        a("s_waitcnt lgkmcnt(0)")
        a("s_cmp_lg_u32 s39, 0")
        a(f"s_cbranch_scc1 {lab}")
        a("s_mov_b32 s16, s14"); a("s_mov_b32 s17, s15"); a(f"s_mov_b32 s18, {STAMP + 0x100000}"); a("s_mov_b32 s19, 0x20000")
        a("s_lshl_b32 s45, s2, 8")
        a(f"s_add_u32 s45, s45, {STAMP + role*128}")
        a("v_mov_b32 v1, s45")
        vals = [60, 62] + [s.mregs[t] for t in range(len(s.marks))] + [98]*(17 - len(s.marks)) + [100, 59]
        for i, r in enumerate(vals):
            a(f"v_mov_b32 v2, s{r}")
            a(f"buffer_store_dword v2, v1, s[16:19], 0 offen offset:{4*i}")
        a("s_waitcnt vmcnt(0)")
        s.lab(lab)
        print("marks", role, s.marks + ["end"], file=sys.stderr)

    PQ = 16
    RAW = 24
    SF = 28
    ZT = 36
    PW = 40
    PK = (44, 48)
    TT = (52, 60)
    Q = 128
    PB = 240
    V_PR, V_PG = 68, 69

    def setup(s):
        a, o = s.a, s.o
        a("s_cmp_ge_u32 s2, 256")
        a("s_cbranch_scc1 L_end")
        a("s_load_dwordx8 s[4:11], s[0:1], 0")
        a("s_load_dwordx2 s[12:13], s[0:1], 32")
        a("s_load_dwordx2 s[14:15], s[0:1], 48")
        if o["stamps"]:
            a("s_memrealtime s[60:61]")
            a("s_memtime s[62:63]")
        a("v_lshrrev_b32 v1, 6, v0")
        a("v_and_b32 v0, 63, v0")
        xm = o["xcdmap"]
        a("s_and_b32 s36, s2, 7")
        a("s_lshr_b32 s37, s2, 3")
        if xm == 4:
            a("s_and_b32 s38, s37, 3")
            a("s_lshl_b32 s36, s36, 2")
            a("s_add_u32 s36, s36, s38")
            a("s_lshr_b32 s37, s37, 2")
        elif xm == 8:
            a("s_and_b32 s38, s37, 7")
            a("s_and_b32 s40, s36, 3")
            a("s_lshl_b32 s40, s40, 3")
            a("s_lshr_b32 s36, s36, 2")
            a("s_lshl_b32 s36, s36, 2")
            a("s_lshr_b32 s37, s37, 3")
            a("s_add_u32 s37, s37, s36")
            a("s_add_u32 s36, s40, s38")
        elif xm == 1:
            a("s_mov_b32 s38, s36")
            a("s_mov_b32 s36, s37")
            a("s_mov_b32 s37, s38")
        a("v_readfirstlane_b32 s39, v1")
        a("v_and_b32 v1, 31, v0")
        a("v_min_u32 v1, 27, v1")
        a("v_lshrrev_b32 v2, 5, v0")
        a("v_mul_u32_u24 v3, 114688, v2")
        a("v_lshl_add_u32 v3, v1, 4, v3")
        a("s_mul_i32 s40, s36, 448")
        a(f"v_add_u32 v{s.PQ}, s40, v3")
        for i in range(1, 8):
            a(f"v_add_u32 v{s.PQ+i}, {14336*i}, v{s.PQ}")
        a("s_mul_i32 s40, s36, 224")
        a("v_lshlrev_b32 v3, 3, v1")
        a("v_add_u32 v4, s40, v3")
        a("s_lshr_b32 s40, s39, 2")
        a("s_lshl_b32 s50, s37, 1")
        a("s_add_u32 s50, s50, s40")
        a("s_and_b32 s51, s39, 3")
        a("s_lshl_b32 s48, s50, 2")
        a("s_add_u32 s48, s48, s51")
        a("s_mul_i32 s48, s48, 16*14336")
        a("s_mul_i32 s49, s50, 7168")
        a("s_mov_b32 s59, 0")
        a("s_waitcnt lgkmcnt(0)")
        s.srd(20, 6, QB); s.srd(24, 8, SB); s.srd(28, 10, SB)
        a("s_cmp_ge_u32 s39, 4")
        a("s_cbranch_scc1 L_help")

    def first_loads(s, qsoff="s48", ssoff="s49"):
        o = s.o
        s.vm.op(f"buffer_load_dwordx2 v[{s.RAW}:{s.RAW+1}], v4, s[24:27], {ssoff} offen", "s")
        s.vm.op(f"buffer_load_dwordx2 v[{s.RAW+2}:{s.RAW+3}], v4, s[28:31], {ssoff} offen", "s")
        for i in range(8):
            r = s.Q + 4*i
            s.vm.op(f"buffer_load_dwordx4 v[{r}:{r+3}], v{s.PQ+i}, s[20:23], {qsoff} offen {o['qpol']}", "q")

    def wr_addr(s):
        a = s.a
        a("v_lshrrev_b32 v3, 3, v1")
        a("v_lshlrev_b32 v3, 3, v3")
        a("v_and_b32 v5, 1, v1")
        a("v_lshl_add_u32 v3, v5, 2, v3")
        a("v_bfe_u32 v5, v1, 1, 2")
        a("v_add_u32 v3, v3, v5")
        a("v_cmp_le_u32 vcc, 24, v1")
        a("s_mul_i32 s40, s51, 3584")
        a("s_lshr_b32 s41, s39, 2")
        a(f"s_mul_i32 s41, s41, {WSLOT}")
        a("v_cndmask_b32 v3, v3, v1, vcc")
        a("s_add_u32 s40, s40, s41")
        a(f"s_add_u32 s40, s40, {WB}")
        a("v_and_b32 v5, 7, v3")
        a("v_xor_b32 v5, v5, v2")
        a("v_lshlrev_b32 v3, 7, v3")
        a("v_add_u32 v3, s40, v3")
        for e in range(4):
            a(f"v_xor_b32 v6, {2*e}, v5")
            a(f"v_lshl_add_u32 v{s.PW+e}, v6, 4, v3")
        a("v_lshlrev_b32 v5, 4, v0")
        a(f"v_add_u32 v{s.V_PR}, s40, v5")
        a("s_lshl_b32 s41, s36, 4")
        a("s_add_u32 s41, s41, s50")
        a(f"s_mul_i32 s41, s41, {WSLOT}")
        a("s_mul_i32 s42, s51, 3584")
        a("s_add_u32 s41, s41, s42")
        a(f"v_add_u32 v{s.V_PG}, s41, v5")

    def dequant(s, wofs=None, mark=None):
        a = s.a
        sl = s.RAW
        s.vm.wait("s")
        a(f"v_lshlrev_b32 v{s.SF}, 16, v{sl}"); a(f"v_and_b32 v{s.SF+1}, 0xffff0000, v{sl}")
        a(f"v_lshlrev_b32 v{s.SF+2}, 16, v{sl+1}"); a(f"v_and_b32 v{s.SF+3}, 0xffff0000, v{sl+1}")
        a(f"v_lshlrev_b32 v{s.ZT}, 16, v{sl+2}"); a(f"v_and_b32 v{s.ZT+1}, 0xffff0000, v{sl+2}")
        a(f"v_lshlrev_b32 v{s.ZT+2}, 16, v{sl+3}"); a(f"v_and_b32 v{s.ZT+3}, 0xffff0000, v{sl+3}")
        for e in range(4): a(f"v_mul_f32_e64 v{s.SF+4+e}, -v{s.ZT+e}, v{s.SF+e}")
        s.vm.wait("q")
        if mark: s.mark(mark)
        for e in range(4):
            T, P = s.TT[e & 1], s.PK[e & 1]
            for i in range(8): a(f"v_cvt_f32_i32 v{T+i}, v{s.Q+4*i+e}")
            for i in range(8): a(f"v_fma_f32 v{T+i}, v{T+i}, v{s.SF+e}, v{s.SF+4+e}")
            for i in range(4): a(f"v_cvt_pk_bf16_f32 v{P+i}, v{T+2*i}, v{T+2*i+1}")
            if wofs is None:
                s.lg.op(f"ds_write_b128 v{s.PW+e}, v[{P}:{P+3}]", "w")
            else:
                a(f"v_add_u32 v6, {wofs}, v{s.PW+e}")
                s.lg.op(f"ds_write_b128 v6, v[{P}:{P+3}]", "w")

    def publish_reads(s):
        for i in range(4):
            r = s.PB + 4*i
            s.lg.op(f"ds_read_b128 v[{r}:{r+3}], v{s.V_PR} offset:{i*1024}", ("pb", i))
    def publish_stores(s, which=(0, 1, 2, 3)):
        a, o = s.a, s.o
        if not which: return
        for i in which:
            r = s.PB + 4*i
            s.lg.wait(("pb", i))
            if i == 3: a("s_mov_b32 exec_hi, 0")
            s.vm.op(f"buffer_store_dwordx4 v[{r}:{r+3}], v{s.V_PG}, s[4:7], 0 offen offset:{i*1024} {o['pubpol']}", "pub")
        a("s_mov_b32 exec_hi, -1")
    def flag_store(s, par):
        a = s.a
        s.vm.wait("pub")
        a("s_lshl_b32 s44, s36, 11")
        a("s_lshl_b32 s45, s37, 7")
        a("s_add_u32 s44, s44, s45")
        a("s_lshl_b32 s45, s51, 1")
        a("s_add_u32 s44, s44, s45")
        a(f"s_add_u32 s44, s44, {FOFF + par*1024}")
        a("v_mov_b32 v5, s44")
        a(f"s_xor_b32 s45, s52, {TAGC}")
        a("v_mov_b32 v6, s45")
        a("s_mov_b64 exec, 1")
        s.vm.op("buffer_store_short v6, v5, s[4:7], 0 offen sc1", "flag")
        a("s_mov_b64 exec, -1")

    ACC = 128
    XF = (8, 24)
    WF = (40, 68)
    VX = {(0,0):96, (1,0):97, (0,1):98, (1,1):99}
    VW = (100, 101)
    V_SW, V_SW6, V_RB, V_GO = 104, 105, 106, 107
    RB = (112, 240)
    CT = (8, 40)
    def acc(s, j, mt): b = s.ACC + 4*(j*4+mt); return f"v[{b}:{b+3}]"
    def accr(s, j, mt, r): return f"v{s.ACC + 4*(j*4+mt) + r}"

    def c_reads(s, step):
        t, h, b = step // 2, step % 2, step % 2
        sl = t % 3
        xr = [f"ds_read_b128 v[{s.XF[b]+4*mt}:{s.XF[b]+4*mt+3}], v{s.VX[(h, sl>>1)]} offset:{(sl&1)*XSLOT + mt*2048}" for mt in range(4)]
        wr = [f"ds_read_b128 v[{s.WF[b]+4*j}:{s.WF[b]+4*j+3}], v{s.VW[j&1]} offset:{sl*WSLOT + h*7168 + j*512}" for j in range(7)]
        return [wr[0]] + xr + wr[1:]

    def mfma(s, step, j, mt):
        if not s.o["mfma"]: return
        b = step % 2
        c = "0" if step == 0 else s.acc(j, mt)
        s.a(f"v_mfma_f32_16x16x32_bf16 {s.acc(j,mt)}, v[{s.WF[b]+4*j}:{s.WF[b]+4*j+3}], v[{s.XF[b]+4*mt}:{s.XF[b]+4*mt+3}], {c}")

    def c_step(s, step, reads, ex=None):
        ri, n = 0, 0
        for j in range(7):
            mts = range(4) if (s.o["order"] == "j" or j % 2 == 0) else range(3, -1, -1)
            for mt in mts:
                s.mfma(step, j, mt)
                n += 1
                if ri < len(reads) and n >= 2:
                    if s.o["reads"]: s.lg.op(reads[ri], "r")
                    ri += 1
                if ex and n in ex: ex[n]()

    def consumer(s):
        a, o = s.a, s.o
        s.vm = WCtr(s, "vmcnt", 63); s.lg = Ctr(s, "lgkmcnt", 15)
        s.marks = []; s.mregs = list(range(64, 96, 2)); s.role = 0
        s.mark("role")
        s.first_loads()
        if o["x0pos"] == 0:
            s.srd(16, 4, XB)
            s.x_addr(112)
            s.stage_of(0); s.x_dma(0, 112)
        if o["bord"]: a("s_barrier")
        s.mark("qiss")
        if o["x0pos"] != 0:
            s.srd(16, 4, XB)
            s.x_addr(112)
        s.srd(4, 14, WSB); s.srd(32, 12, OB)
        a("s_lshl_b32 s44, s36, 7")
        a("s_lshl_b32 s45, s37, 2")
        a("s_add_u32 s44, s44, s45")
        a(f"s_add_u32 s44, s44, {EOFF}")
        a("s_load_dword s52, s[14:15], s44")
        s.wr_addr()
        a("v_and_b32 v1, 15, v0")
        a("v_lshrrev_b32 v2, 4, v0")
        a("v_lshrrev_b32 v3, 1, v1")
        a("v_xor_b32 v3, v2, v3")
        a("v_lshlrev_b32 v3, 4, v3")
        a("v_lshl_add_u32 v3, v1, 7, v3")
        a("s_lshl_b32 s40, s39, 13")
        a(f"v_add_u32 v{s.VX[(0,0)]}, s40, v3")
        a(f"v_xor_b32 v{s.VX[(1,0)]}, 64, v{s.VX[(0,0)]}")
        a(f"v_add_u32 v{s.VX[(0,1)]}, 0x10000, v{s.VX[(0,0)]}")
        a(f"v_add_u32 v{s.VX[(1,1)]}, 0x10000, v{s.VX[(1,0)]}")
        a("v_and_b32 v3, 1, v2")
        a("v_lshl_add_u32 v3, v1, 1, v3")
        a("v_lshrrev_b32 v5, 2, v1")
        a("v_xor_b32 v3, v3, v5")
        a("v_lshlrev_b32 v3, 4, v3")
        a("v_lshrrev_b32 v5, 1, v2")
        a("v_mul_u32_u24 v5, 3584, v5")
        a(f"v_add_u32 v5, {WB}, v5")
        a(f"v_add_u32 v{s.VW[0]}, v3, v5")
        a("v_xor_b32 v3, 64, v3")
        a(f"v_add_u32 v{s.VW[1]}, v3, v5")
        a("s_mul_i32 s41, s39, 15360")
        a(f"s_add_u32 s41, s41, {STG}")
        a("v_mul_u32_u24 v4, 240, v1")
        a("v_add_u32 v4, s41, v4")
        a(f"v_lshl_add_u32 v{s.V_SW}, v2, 4, v4")
        a(f"v_lshl_add_u32 v{s.V_SW6}, v2, 3, v4")
        a("v_min_u32 v4, 55, v0")
        a("v_mul_u32_u24 v5, 37, v4")
        a("v_lshrrev_b32 v5, 9, v5")
        a("v_mul_u32_u24 v3, 14, v5")
        a("v_sub_u32 v3, v4, v3")
        a("v_mul_u32_u24 v7, 240, v5")
        a("v_lshl_add_u32 v7, v3, 4, v7")
        a(f"v_add_u32 v{s.V_RB}, s41, v7")
        a("s_lshl_b32 s42, s37, 8")
        a("s_lshl_b32 s43, s39, 6")
        a("s_add_u32 s42, s42, s43")
        a("s_mul_i32 s42, s42, 7168")
        a("s_mul_i32 s43, s36, 224")
        a("s_add_u32 s42, s42, s43")
        a("v_mul_u32_u24 v7, 7168, v5")
        a("v_lshl_add_u32 v7, v3, 4, v7")
        a(f"v_add_u32 v{s.V_GO}, s42, v7")
        if o["prio"]: a(f"s_setprio {o['prio']}")
        s.dequant(mark="qA")
        s.lg.all()
        s.mark("deqA")
        if o["x0pos"] == 1:
            s.stage_of(0); s.x_dma(0, 112)
        if not o["nopub"]:
            s.publish_reads()
            if o["pubpos"] == 0: s.publish_stores()
        if o["x0pos"] == 2:
            s.stage_of(0); s.x_dma(0, 112)
        if o["x1pos"] == 0:
            s.stage_of(1); s.x_dma(1, 112)
        s.mark("pubiss")
        if o["fa"] == 0 and not o["nopub"]:
            s.flag_store(0)
            s.mark("flagA")
        a("s_barrier")
        s.mark("B0")
        if o["pubpos"] == 1 and not o["nopub"]: s.publish_stores()
        if o["x1pos"] == 2:
            s.stage_of(1); s.x_dma(1, 112)
        if not o["reads"]:
            for r in range(8, 96): a(f"v_mov_b32 v{r}, 0")
        s.vm.wait(("x", 0))
        if o["reads"]:
            for r in s.c_reads(0): s.lg.op(r, "r")
        nsteps = 2*NS
        for step in range(nsteps):
            s.lg.all()
            if step == 1 and o["fa"] == 2 and not o["nopub"]:
                s.flag_store(0)
                s.mark("flagA")
            if step == 2:
                if o["x1pos"] == 1:
                    s.stage_of(1); s.x_dma(1, 112)
                if o["fa"] == 1 and not o["nopub"]:
                    s.flag_store(0)
                    s.mark("flagA")
                s.mark("Adone")
                s.vm.wait(("x", 1))
                a("s_barrier")
                s.mark("B1")
                if o["reads"]:
                    for r in s.c_reads(2): s.lg.op(r, "r")
                s.lg.all()
            if step % 2 == 1 and 1 < step < nsteps - 1:
                t = (step+1)//2
                a("s_barrier")
                if t in (2, 3, 4, 8, 12, 15): s.mark(f"B{t}")
            if step == nsteps - 1 and o["epi"] and o["store"]:
                s.last_step(step)
            else:
                ex = None
                if step == 0 and o["x1pos"] == 3:
                    s.stage_of(1)
                    a("s_lshl_b32 s46, s53, 7")
                    if o["fixx"]: a("s_lshl_b32 s46, s37, 8")
                    ex = {1 + 3*i: (lambda i=i: s.x_one(1, i, 112)) for i in range(8)}
                s.c_step(step, s.c_reads(step+1) if (step + 1 < nsteps and step != 1) else [], ex)
        s.mark("mainend")
        if not (o["epi"] and o["store"]): s.epilogue_simple()
        s.write_marks(0)
        a("s_endpgm")

    def cvt_ops(s, mt):
        t = s.CT[mt & 1]
        ops = []
        for u in range(3):
            d = t + 4*u
            for q, (jj, r) in enumerate(((0,0),(0,2),(1,0),(1,2))):
                ops.append(lambda d=d, q=q, jj=jj, r=r, u=u: s.a(f"v_cvt_pk_bf16_f32 v{d+q}, {s.accr(2*u+jj,mt,r)}, {s.accr(2*u+jj,mt,r+1)}"))
            ops.append(lambda d=d, u=u: s.lg.op(f"ds_write_b128 v{s.V_SW}, v[{d}:{d+3}] offset:{mt*3840 + u*64}", ("w", mt)))
        d = t + 12
        ops.append(lambda: s.a(f"v_cvt_pk_bf16_f32 v{d}, {s.accr(6,mt,0)}, {s.accr(6,mt,1)}"))
        ops.append(lambda: s.a(f"v_cvt_pk_bf16_f32 v{d+1}, {s.accr(6,mt,2)}, {s.accr(6,mt,3)}"))
        ops.append(lambda: s.lg.op(f"ds_write_b64 v{s.V_SW6}, v[{d}:{d+1}] offset:{mt*3840 + 192}", ("w", mt)))
        return ops
    def rb_ops(s, mt):
        R = s.RB[mt & 1]
        ops = [lambda: s.lg.wait(("w", mt))]
        for i in range(4):
            ops.append(lambda i=i: s.lg.op(f"ds_read_b128 v[{R+4*i}:{R+4*i+3}], v{s.V_RB} offset:{960*(4*mt+i)}", ("rb", mt, i)))
        return ops
    def st_ops(s, mt):
        R = s.RB[mt & 1]
        ops = []
        for i in range(4):
            def f(i=i):
                s.a(f"s_mov_b32 s44, {28672*(4*mt+i)}")
                s.lg.wait(("rb", mt, i))
                s.vm.op(f"buffer_store_dwordx4 v[{R+4*i}:{R+4*i+3}], v{s.V_GO}, s[32:35], s44 offen {s.o['stpol']}", "st")
            ops.append(f)
        return ops

    def last_step(s, step):
        a, o = s.a, s.o
        if not o["mfma"]:
            for r in range(128, 240): a(f"v_mov_b32 v{r}, 0")
        def group(mt, ops, start):
            k = 0
            for j in range(7):
                s.mfma(step, j, mt)
                if j + 1 >= start:
                    rem = 7 - j
                    n = -(-(len(ops) - k) // rem)
                    for _ in range(n):
                        if k < len(ops): ops[k](); k += 1
            assert k == len(ops)
        group(0, [], 1)
        group(1, s.cvt_ops(0), 2)
        c1 = s.cvt_ops(1)
        group(2, c1[:5] + s.rb_ops(0) + c1[5:], 2)
        c2 = s.cvt_ops(2)
        st0 = s.st_ops(0)
        group(3, c2[:5] + s.rb_ops(1) + c2[5:10] + st0[:2] + c2[10:] + st0[2:], 2)
        c3 = s.cvt_ops(3)
        st1 = s.st_ops(1)
        a("s_nop 0")
        for f in s.rb_ops(2) + c3[:5] + st1[:2] + c3[5:10] + st1[2:] + c3[10:]: f()
        st2 = s.st_ops(2)
        for f in s.rb_ops(3): f()
        for f in st2: f()
        for f in s.st_ops(3): f()

    def epilogue_simple(s):
        a, o = s.a, s.o
        if not o["store"]: return
        if not o["mfma"]:
            for r in range(128, 240): a(f"v_mov_b32 v{r}, 0")
        a("s_nop 7"); a("s_nop 1")
        for mt in range(4):
            for f in s.cvt_ops(mt): f()
            for f in s.rb_ops(mt): f()
            for f in s.st_ops(mt): f()

    HX = 72
    V_WD = 80
    V_TX, V_TD, V_T2 = 81, 82, 87
    V_E, V_TAG, V_FA, V_FL = 83, 84, 85, 88

    def stage_of(s, j):
        a = s.a
        if j < 2:
            a("s_lshl_b32 s53, s37, 1")
            if j: a("s_add_u32 s53, s53, 1")
        else:
            d = j - 1 if j <= 8 else j - 8
            if s.o["xo"]:
                a(f"s_add_u32 s53, s98, {d-1}")
                a("s_cmp_ge_u32 s53, 7")
                a("s_cselect_b32 s44, 7, 0")
                a("s_sub_u32 s53, s53, s44")
                a("s_add_u32 s53, s53, s37")
                a("s_add_u32 s53, s53, 1")
            else:
                a(f"s_add_u32 s53, s37, {d}")
            a("s_and_b32 s53, s53, 7")
            a("s_lshl_b32 s53, s53, 1")
            if j > 8: a("s_add_u32 s53, s53, 1")

    def x_addr(s, HX):
        a, o = s.a, s.o
        a("v_lshrrev_b32 v3, 3, v0")
        a("s_lshl_b32 s42, s37, 8")
        a("s_lshl_b32 s43, s39, 6")
        a("s_add_u32 s42, s42, s43")
        a("v_add_u32 v3, s42, v3")
        a("v_lshlrev_b32 v3, 11, v3")
        a("v_and_b32 v5, 7, v0")
        a("v_lshrrev_b32 v6, 4, v0")
        a("v_xor_b32 v5, v5, v6")
        a(f"v_lshl_add_u32 v{HX}, v5, 4, v3")
        a(f"v_xor_b32 v5, 64, v{HX}")
        a("s_lshl_b32 s47, s39, 13")
        if o["xrot"]:
            a("s_and_b32 s38, s36, 3")
            a("s_lshl_b32 s38, s38, 11")
            a(f"v_mov_b32 v6, v{HX}")
            for i in range(8):
                a(f"s_add_u32 s40, s38, {i*1024}")
                a("s_and_b32 s40, s40, 0x1fff")
                a("s_lshl_b32 s40, s40, 4")
                a(f"v_add_u32 v{HX+i}, s40, {'v5' if i & 1 else 'v6'}")
        else:
            for i in range(1, 8):
                src = "v5" if i & 1 else f"v{HX}"
                a(f"v_add_u32 v{HX+i}, {i*16384 - (i&3)*1024}, {src}")

    def x_dma(s, j, HX=None):
        a, o = s.a, s.o
        HX = HX or s.HX
        a("s_lshl_b32 s46, s53, 7")
        if o["fixx"]: a("s_lshl_b32 s46, s37, 8")
        for i in range(8):
            if o["xrot"]:
                s.x_one(j, i, HX); continue
            if i % 4 == 0:
                a(f"s_add_u32 m0, s47, {(j % 3)*XSLOT + (i>>2)*4096}")
                a("s_nop 0")
            s.vm.op(f"buffer_load_dwordx4 v{HX+i}, s[16:19], s46 offen offset:{(i&3)*1024} {o['xpol']} lds", ("x", j))

    def x_one(s, j, i, HX=None):
        a, o = s.a, s.o
        HX = HX or s.HX
        if o["xrot"]:
            a(f"s_add_u32 s40, s38, {i*1024}")
            a("s_and_b32 s40, s40, 0x1fff")
            a("s_add_u32 s40, s40, s47")
            a(f"s_add_u32 m0, s40, {(j % 3)*XSLOT}")
            a("s_nop 0")
            s.vm.op(f"buffer_load_dwordx4 v{HX+i}, s[16:19], s46 offen {o['xpol']} lds", ("x", j))
        else:
            a(f"s_add_u32 m0, s47, {(j % 3)*XSLOT + (i>>2)*4096}")
            a("s_nop 0")
            s.vm.op(f"buffer_load_dwordx4 v{HX+i}, s[16:19], s46 offen offset:{(i&3)*1024} {o['xpol']} lds", ("x", j))
    def xw_dma(s, j):
        a, o = s.a, s.o
        a("s_lshl_b32 s46, s53, 7")
        if o["fixx"]: a("s_lshl_b32 s46, s37, 8")
        a(f"s_mul_i32 s54, s53, {WSLOT}")
        if o["fixw"]: a("s_mov_b32 s54, 0")
        a("s_add_u32 s54, s54, s57")
        def one(i):
            a("s_mov_b32 m0, s56")
            a("s_nop 0")
            s.vm.op(f"buffer_load_dwordx4 v{s.V_WD}, s[4:7], s54 offen offset:{i*1024} {o['wpol']} lds", ("w", j))
        for i in range(8):
            if i in (0, 2, 4): one(i // 2)
            if i == 6: s.only_wave(2, lambda: one(3), "s_cmp_ge_u32")
            s.x_one(j, i)

    def w_dma(s, j):
        a, o = s.a, s.o
        a(f"s_mul_i32 s54, s53, {WSLOT}")
        if o["fixw"]: a("s_mov_b32 s54, 0")
        a("s_add_u32 s54, s54, s57")
        a("s_mov_b32 m0, s56")
        a("s_nop 0")
        def one(i): s.vm.op(f"buffer_load_dwordx4 v{s.V_WD}, s[4:7], s54 offen offset:{i*1024} {o['wpol']} lds", ("w", j))
        for i in range(3): one(i)
        s.only_wave(2, lambda: one(3), "s_cmp_ge_u32")

    def touch_x(s, d):
        a = s.a
        a(f"s_add_u32 s44, s37, {d}")
        a("s_and_b32 s44, s44, 7")
        a("s_lshl_b32 s44, s44, 8")
        a(f"s_add_u32 s45, s37, {d+1}")
        a("s_and_b32 s45, s45, 7")
        a("s_lshl_b32 s45, s45, 8")
        a("v_mov_b32 v5, s44")
        a("v_mov_b32 v6, s45")
        a("v_and_b32 v7, 2, v0")
        a("v_cmp_eq_u32 vcc, 0, v7")
        a("s_nop 1")
        a("v_cndmask_b32 v5, v6, v5, vcc")
        a(f"v_add_u32 v5, v5, v{s.V_TX}")
        a("s_mov_b32 exec_hi, 0")
        s.vm.op(f"buffer_load_dword v{s.V_TD}, v5, s[16:19], s58 offen {s.o['txpol']}", "t")
        a("s_mov_b32 exec_hi, -1")

    def spoll_issue(s, par):
        if s.o["vp"]:
            s.a("s_mov_b64 exec, 0xff")
            s.vm.op(f"buffer_load_dwordx2 v[{s.V_FL}:{s.V_FL+1}], v{s.V_FA}, s[4:7], 0 offen offset:{par*1024} sc1", "poll")
            s.a("s_mov_b64 exec, -1")
            return
        for p in range(8):
            s.a(f"s_load_dwordx2 s[{64+2*p}:{65+2*p}], s[42:43], {par*1024 + p*128} glc")
    def spin(s, done):
        a = s.a
        lp = s.newlab()
        if s.o["vp"]:
            a("s_lshl_b32 s93, 1, s99")
            a("s_and_b32 s91, s91, 1024")
            s.lab(lp)
            a("s_mov_b32 exec_hi, 0")
            a("s_mov_b32 exec_lo, s93")
            a(f"buffer_load_dwordx2 v[{s.V_FL}:{s.V_FL+1}], v{s.V_FA}, s[4:7], s91 offen sc1")
            a("s_waitcnt vmcnt(0)")
            a(f"v_cmp_ne_u32 vcc, v{s.V_FL}, v{s.V_TAG}")
            a(f"v_cmp_ne_u32 s[44:45], v{s.V_FL+1}, v{s.V_TAG}")
            a("s_mov_b64 exec, -1")
            a("s_nop 0")
            a("s_or_b32 s44, s44, vcc_lo")
            if s.o["forcefb"] != 2: a(f"s_cbranch_scc0 {done}")
            a("s_sub_u32 s88, s88, 1")
            a("s_cmp_lg_u32 s88, 0")
            a(f"s_cbranch_scc1 {lp}")
            a("s_add_u32 s59, s59, 1")
            return
        a("s_mov_b32 m0, s99")
        a("s_nop 0")
        a("s_movrels_b32 s93, s80")
        s.lab(lp)
        a("s_load_dwordx2 s[64:65], s[42:43], s91 glc")
        a("s_waitcnt lgkmcnt(0)")
        a("s_xor_b32 s44, s64, s93")
        a("s_xor_b32 s45, s65, s93")
        a("s_or_b32 s44, s44, s45")
        if s.o["forcefb"] != 2: a(f"s_cbranch_scc0 {done}")
        a("s_sub_u32 s88, s88, 1")
        a("s_cmp_lg_u32 s88, 0")
        a(f"s_cbranch_scc1 {lp}")
        a("s_add_u32 s59, s59, 1")
    def smask(s, dst):
        a = s.a
        a(f"s_mov_b32 {dst}, 0")
        for p in range(8):
            a(f"s_xor_b32 s44, s{64+2*p}, s{80+p}")
            a(f"s_xor_b32 s45, s{65+2*p}, s{80+p}")
            a("s_or_b32 s44, s44, s45")
            a(f"s_cselect_b32 s44, 0, {1 << p}")
            a(f"s_or_b32 {dst}, {dst}, s44")
    def seval(s, par):
        if s.o["vp"]:
            a = s.a
            s.vm.wait("poll")
            a(f"v_cmp_eq_u32 vcc, v{s.V_FL}, v{s.V_TAG}")
            a(f"v_cmp_eq_u32 s[44:45], v{s.V_FL+1}, v{s.V_TAG}")
            a("s_nop 1")
            a(f"s_and_b32 {'s90' if par else 's89'}, s44, vcc_lo")
            return
        s.a("s_waitcnt lgkmcnt(0)")
        s.lg.q = []
        s.smask("s90" if par else "s89")
    def sensure(s, j):
        a, o = s.a, s.o
        par = 1 if j > 8 else 0
        rdy = "s90" if par else "s89"
        a(f"s_add_u32 s56, s55, {WB + (j % 3)*WSLOT}")
        if o["nosync"]: return
        ok = s.newlab()
        a("s_lshr_b32 s99, s53, 1")
        a(f"s_bitcmp1_b32 {rdy}, s99")
        if o["forcefb"] == 0: a(f"s_cbranch_scc1 {ok}")
        a("s_lshl_b32 s91, s99, 7")
        if par: a("s_add_u32 s91, s91, 1024")
        if not o["fallback"]:
            a(f"s_mov_b32 s88, {SPIN}")
            s.spin(ok)
            s.lab(ok)
            return
        a(f"s_mov_b32 s92, {WB + (j % 3)*WSLOT}")
        a("s_getpc_b64 s[94:95]")
        l2 = s.newlab()
        s.lab(l2)
        a(f"s_add_u32 s94, s94, L_slow-{l2}")
        a("s_addc_u32 s95, s95, 0")
        a("s_swappc_b64 s[96:97], s[94:95]")
        s.lab(ok)

    def poll_issue(s, par):
        s.a("s_mov_b32 exec_hi, 0")
        s.vm.op(f"buffer_load_dword v{s.V_FL}, v{s.V_FA}, s[4:7], 0 offen offset:{par*128} sc1", "poll")
        s.a("s_mov_b32 exec_hi, -1")

    def ready_bits(s, dst):
        a = s.a
        a(f"v_cmp_eq_u32 vcc, v{s.V_FL}, v{s.V_TAG}")
        a("s_nop 1")
        a(f"s_mov_b32 {dst}, vcc_lo")

    def ensure(s, j):
        a, o = s.a, s.o
        par = 1 if j > 8 else 0
        rdy = "s90" if par else "s89"
        if j == 2 or j == 9:
            s.vm.wait("poll")
            s.ready_bits(rdy)
        a(f"s_add_u32 s56, s55, {WB + (j % 3)*WSLOT}")
        if o["nosync"]: return
        ok = s.newlab()
        a("s_lshr_b32 s44, s53, 1")
        a("s_lshl_b32 s44, s44, 2")
        a(f"s_lshr_b32 s45, {rdy}, s44")
        a("s_and_b32 s45, s45, 15")
        a("s_cmp_eq_u32 s45, 15")
        if o["forcefb"] == 0: a(f"s_cbranch_scc1 {ok}")
        a(f"s_movk_i32 s91, {par*128}")
        if not o["fallback"]:
            lp = s.newlab()
            a(f"s_mov_b32 s88, {SPIN}")
            s.lab(lp)
            a("s_load_dwordx16 s[64:79], s[14:15], s91 glc")
            a("s_waitcnt lgkmcnt(0)")
            s.smask(rdy)
            a(f"s_bitcmp1_b32 {rdy}, s99")
            a(f"s_cbranch_scc1 {ok}")
            a("s_sub_u32 s88, s88, 1")
            a("s_cmp_lg_u32 s88, 0")
            a(f"s_cbranch_scc1 {lp}")
            a("s_add_u32 s59, s59, 1")
            s.lab(ok)
            return
        a(f"s_mov_b32 s92, {WB + (j % 3)*WSLOT}")
        a("s_getpc_b64 s[94:95]")
        l2 = s.newlab()
        s.lab(l2)
        a(f"s_add_u32 s94, s94, L_slow-{l2}")
        a("s_addc_u32 s95, s95, 0")
        a("s_swappc_b64 s[96:97], s[94:95]")
        a(f"s_mov_b32 {rdy}, s93")
        s.lab(ok)

    def slow_handler(s):
        a, o = s.a, s.o
        s.lab("L_slow")
        lp, done, fb = s.newlab(), s.newlab(), s.newlab()
        a("s_cmp_lg_u32 s59, 0")
        a(f"s_cselect_b32 s88, 1, {SPIN}")
        if o["forcefb"]: a("s_mov_b32 s88, 1")
        s.spin(done)
        if o["fallback"]:
            svm, slg = s.vm, s.lg
            a("s_mul_i32 s49, s53, 7168")
            a("s_lshl_b32 s48, s53, 2")
            a("s_mul_i32 s48, s48, 16*14336")
            a("s_mul_i32 s45, s51, 3584")
            a(f"s_add_u32 s45, s45, {WB + WSLOT}")
            a("s_sub_u32 s92, s92, s45")
            a("s_movk_i32 s88, 4")
            s.lab(fb)
            s.vm = WCtr(s, "vmcnt", 63); s.lg = Ctr(s, "lgkmcnt", 15)
            s.first_loads()
            s.dequant(wofs="s92")
            s.lg.all()
            s.vm, s.lg = svm, slg
            a(f"s_add_u32 s48, s48, {16*14336}")
            a("s_add_u32 s92, s92, 3584")
            a("s_sub_u32 s88, s88, 1")
            a("s_cmp_lg_u32 s88, 0")
            a(f"s_cbranch_scc1 {fb}")
            a(f"s_mov_b32 s56, {DUMMY}")
        s.lab(done)
        a("s_setpc_b64 s[96:97]")

    def epochs(s):
        a = s.a
        a("s_lshl_b32 s44, s36, 7")
        a(f"s_add_u32 s44, s44, {EOFF}")
        if s.o["vp"]:
            a("v_and_b32 v5, 7, v0")
            a(f"v_lshlrev_b32 v{s.V_FA}, 7, v5")
            a("v_lshlrev_b32 v5, 2, v5")
            s.vm.op(f"buffer_load_dword v{s.V_E}, v5, s[4:7], s44 offen", "e")
            a("s_lshl_b32 s45, s36, 11")
            a(f"s_add_u32 s45, s45, {FOFF}")
            a(f"v_add_u32 v{s.V_FA}, s45, v{s.V_FA}")
        else:
            a("s_load_dwordx8 s[80:87], s[14:15], s44")
        a("s_lshl_b32 s45, s37, 2")
        a("s_add_u32 s44, s44, s45")
        a("s_load_dword s52, s[14:15], s44")

    def helper(s):
        a, o = s.a, s.o
        s.vm = WCtr(s, "vmcnt", 63); s.lg = Ctr(s, "lgkmcnt", 15)
        s.lab("L_help")
        assert not (o["stamps"] and o["fallback"])
        s.marks = []; s.mregs = [8, 10, 12, 32, 34, 24, 26, 28, 30, 20, 22, 0]; s.role = 1
        s.mark("role")
        a("s_sub_u32 s39, s39, 4")
        s.srd(16, 4, XB); s.srd(4, 14, WSB)
        a("v_lshrrev_b32 v5, 2, v0")
        a("v_lshlrev_b32 v5, 11, v5")
        a("v_and_b32 v6, 1, v0")
        a(f"v_lshl_add_u32 v{s.V_TX}, v6, 7, v5")
        a("s_lshl_b32 s40, s37, 8")
        a("s_lshl_b32 s41, s36, 3")
        a("s_add_u32 s40, s40, s41")
        a("s_lshl_b32 s58, s40, 11")
        def tf():
            def one(h): s.vm.op(f"buffer_load_dword v{s.V_TD}, v{s.V_TX}, s[16:19], s58 offen offset:{h*1024} {o['txpol']}", "t")
            s.only_wave(0, lambda: one(0)); s.only_wave(1, lambda: one(1))
        if o["tfull"]:
            a("v_lshrrev_b32 v5, 3, v0")
            a("v_lshlrev_b32 v5, 11, v5")
            a("v_and_b32 v6, 7, v0")
            a(f"v_lshl_add_u32 v{s.V_TX}, v6, 7, v5")
        if o["tfull"] == 1: tf()
        if o["touch"] and o["tpre"] == 0: s.only_wave(0, lambda: s.touch_x(0))
        s.x_addr(s.HX)
        a("s_add_u32 s39, s39, 4")
        s.wr_addr()
        a("s_sub_u32 s39, s39, 4")
        a("s_lshl_b32 s55, s39, 12")
        a("s_cmp_eq_u32 s39, 3")
        a("s_cselect_b32 s44, 1024, 0")
        a("s_sub_u32 s55, s55, s44")
        a("v_lshlrev_b32 v5, 4, v0")
        a(f"v_add_u32 v{s.V_WD}, s55, v5")
        a(f"s_mul_i32 s57, s36, {16*WSLOT}")
        a("s_lshl_b32 s44, s36, 11")
        a(f"s_add_u32 s44, s44, {FOFF}")
        a("s_add_u32 s42, s14, s44")
        a("s_addc_u32 s43, s15, 0")
        a("s_mov_b32 s89, 0")
        s.epochs()
        if o["bord"]: a("s_barrier")
        s.mark("ord")
        if o["tfull"] == 2: tf()
        if o["x0pos"] == 3:
            s.stage_of(0); s.x_dma(0)
        s.first_loads()
        if o["tfull"] == 3: tf()
        if o["x0pos"] == 4:
            s.stage_of(0); s.x_dma(0)
        if o["touch"] and o["tpre"] == 1: s.only_wave(0, lambda: s.touch_x(0))
        s.mark("qiss")
        s.vm.wait(("x", 0))
        if o["hq"]: s.vm.wait("q")
        a("s_barrier")
        s.mark("B0")
        ts = [int(x) for x in o["tsched"].split(",")] if o["touch"] else []
        if o["touch"] and o["tpre"] == 2: s.only_wave(0, lambda: s.touch_x(0))
        if o["x2pos"] == 0:
            s.stage_of(2); s.x_dma(2)
        for k, tt in enumerate(ts):
            if tt == 0: s.only_wave((k + 1) & 3, lambda: s.touch_x(2 + 2*k))
        a("s_waitcnt lgkmcnt(0)")
        if o["vp"]:
            s.vm.wait("e")
            a(f"v_xor_b32 v5, {TAGC}, v{s.V_E}")
            a("v_and_b32 v5, 0xffff, v5")
            a(f"v_mul_u32_u24 v{s.V_TAG}, 0x10001, v5")
        for p in range(0 if o["vp"] else 8):
            a(f"s_xor_b32 s{80+p}, s{80+p}, {TAGC}")
            a(f"s_and_b32 s{80+p}, s{80+p}, 0xffff")
            a(f"s_mul_i32 s{80+p}, s{80+p}, 0x10001")
        s.dequant(mark="qB")
        s.lg.all()
        s.mark("deqB")
        if o["x2pos"] == 2:
            s.stage_of(2); s.x_dma(2)
        for k, tt in enumerate(ts):
            if tt == 99: s.only_wave((k + 1) & 3, lambda: s.touch_x(2 + 2*k))
        if o["poll0"]: s.spoll_issue(0)
        if o["hprio"]: a(f"s_setprio {o['hprio']}")
        a("s_barrier")
        s.mark("B1")
        queue = []
        for j in range(2, NS):
            if j == 2:
                queue.append(("W", 2))
                if o["x2pos"] == 1: queue += [("x", 2, i) for i in range(8)]
            elif o["wfirst"]:
                queue.append(("W", j))
                queue += [("x", j, i) for i in range(8)]
            else:
                queue += [("x", j, i) for i in range(8)]
                queue.append(("W", j))
        quota = [int(x) for x in o["quota"].split(",")]
        cur = None
        pb = [int(x) for x in o["pubB"].split(",")]
        for t in range(1, NS - 1):
            n = quota[t-1]
            if t == 1 and not o["nopub"]: s.publish_reads()
            while queue:
                op = queue[0]
                j = op[1]
                cost = 4 if op[0] == "W" else 1
                must = j <= t + 1
                if j > t + 2 or (n < cost and not must): break
                queue.pop(0)
                n -= cost
                if op[0] == "W":
                    assert j <= 8 or t > o["flagB"] + 1 or o["nopub"]
                    assert j != 3 or t > 1 or not o["vp"] or o["poll3"] or o["poll0"]
                    if j == 3: s.mark("p1pre3")
                    if j == 9 or (j == 3 and (o["poll3"] or not o["poll0"])) or (j == 2 and o["poll0"]): s.seval(1 if j == 9 else 0)
                    if j == 3: s.mark("p1sev3")
                    s.stage_of(j)
                    s.sensure(j)
                    if j == 2: s.mark("ens2")
                    s.w_dma(j)
                    if j == 2: s.mark("p1W2")
                    if j == 2 and (not o["vp"] or o["poll3"]): s.spoll_issue(0)
                    if j == 8 and not o["vp"]: s.spoll_issue(1)
                else:
                    if cur != j:
                        s.stage_of(j)
                        a("s_lshl_b32 s46, s53, 7")
                        if o["fixx"]: a("s_lshl_b32 s46, s37, 8")
                        cur = j
                    if o["xrot"] or op[2] % 4 == 0 or s.m0x != (j, op[2] >> 2): s.x_one(j, op[2])
                    else: s.vm.op(f"buffer_load_dwordx4 v{s.HX+op[2]}, s[16:19], s46 offen offset:{(op[2]&3)*1024} {o['xpol']} lds", ("x", j))
                    s.m0x = (j, op[2] >> 2)
                if op[0] == "W": s.m0x = None
            if o["vp"] and t == 1 and not o["poll3"] and not o["poll0"]: s.spoll_issue(0)
            if o["vp"] and t == o["flagB"] + 1: s.spoll_issue(1)
            for k, tt in enumerate(ts):
                if tt == t: s.only_wave((k + 1) & 3, lambda: s.touch_x(2 + 2*k))
            if not o["nopub"]:
                s.publish_stores([i for i in range(4) if pb[i] == t])
                if t == o["flagB"]: s.flag_store(1)
            if t == 1: s.mark("p1iss")
            s.vm.wait(("x", t+1))
            if t == 1: s.mark("p1x2")
            s.vm.wait(("w", t+1))
            if t == 1 and not o["nopub"]: s.lg.all()
            a("s_barrier")
            if t in (1, 2, 3): s.mark(f"B{t+1}")
        assert not queue
        def ep():
            a("s_lshl_b32 s44, s36, 7")
            a("s_lshl_b32 s45, s37, 2")
            a("s_add_u32 s44, s44, s45")
            a(f"s_add_u32 s44, s44, {EOFF}")
            a("s_add_u32 s45, s52, 1")
            a("v_mov_b32 v5, s44")
            a("v_mov_b32 v6, s45")
            a("s_mov_b64 exec, 1")
            s.vm.op("buffer_store_dword v6, v5, s[4:7], 0 offen sc1", "ep")
            a("s_mov_b64 exec, -1")
        s.only_wave(0, ep)
        s.write_marks(1)
        a("s_endpgm")
        if o["fallback"]: s.slow_handler()

    def build(s):
        s.setup()
        s.consumer()
        s.helper()
        s.lab("L_end")
        s.a("s_endpgm")
        hdr = open("cdna_kernels/%s.s.ref" % NAME).read().split("; Override launch")[0]
        out = hdr + f"; @launch grid=(256,1,1) block=(512,1,1) lds={LDS}\n"
        out += f'.amdgcn_target "amdgcn-amd-amdhsa--gfx950"\n.text\n.globl {NAME}_kernel\n.p2align 8\n.type {NAME}_kernel,@function\n{NAME}_kernel:\n'
        out += "\n".join(s.L) + "\n"
        out += f""".section .rodata,"a"
.p2align 6
.amdhsa_kernel {NAME}_kernel
  .amdhsa_next_free_vgpr 256
  .amdhsa_next_free_sgpr 102
  .amdhsa_accum_offset 256
  .amdhsa_group_segment_fixed_size 0
  .amdhsa_kernarg_size 56
  .amdhsa_user_sgpr_count 2
  .amdhsa_user_sgpr_kernarg_segment_ptr 1
  .amdhsa_system_sgpr_workgroup_id_x 1
  .amdhsa_float_denorm_mode_32 3
.end_amdhsa_kernel
"""
        return out

if __name__ == "__main__":
    out = sys.argv[1]
    kw = {}
    for x in sys.argv[2:]:
        k, v = x.split("=")
        kw[k] = int(v) if v.lstrip("-").isdigit() else (v.replace("_", " ").replace("none", "") if k.endswith("pol") else v)
    open(out, "w").write(Gen(**kw).build())
```

```python
import sys

NAME = "standalone__weight_only_int_quip_2__prompt"
M, K, N = 2048, 1024, 3584
XB, QB, SB, OB = M*K*2, K*N*4, 16*N*2, M*N*2
NS = 16
XSLOT = 32768
WSLOT = 14336
FOFF = 32*16*WSLOT
EOFF = FOFF + 65536
WSB = EOFF + 4096
STAMP = 16 << 20
TAGC = 0xe995
SPIN = 4096
SEQ = [(1,0),(0,1),(2,0),(1,1),(3,0),(2,1),(3,1)]

DEF = dict(
    mfma=1, store=1, reads=1, stamps=0, mk=0, prio=1, hprio=0, xcdmap=8, nxs=3, nws=3,
    stpol="nt", xpol="", qpol="", wpol="sc1", pubpol="sc1", txpol="",
    touch=1, t1pos=2, t2pos=0, epi=1, fallback=1, forcefb=0, nosync=0, nopub=0, delay=0, fixx=0, fixw=0,
    bord=1, ilv=1, fa=0, pubB="1,1,1,1", flagB=3, pollB=5, xpre=1,
    quota="12,12,12,12,12,12,12,12,12,12,12,12,12,12", seqmode=1, cpf=6, poll0=1, x0c=0, lite=0, stpol1="", b15=1, mrt=0, flagpol="sc1", order="j", tfull=1, w2pre=1, pbc=1, pbs=3, fbs=8, t1n=4, x1pos=0, xprepos=1, pollpos=0,
)

class Ctr:
    def __init__(s, g, name, mx): s.g, s.name, s.mx, s.q = g, name, mx, []
    def op(s, text, tag): s.g.a(text); s.q.append(tag)
    def wait(s, tag):
        idx = [i for i, t in enumerate(s.q) if t == tag]
        if not idx: return
        n = min(len(s.q) - 1 - idx[-1], s.mx)
        s.g.a(f"s_waitcnt {s.name}({n})")
        s.q = s.q[len(s.q)-n:] if n else []
    def all(s):
        s.g.a(f"s_waitcnt {s.name}(0)"); s.q = []

class WCtr:
    def __init__(s, g, name, mx): s.g, s.name, s.mx = g, name, mx; s.q = [[] for _ in range(4)]; s.cur = (0,1,2,3)
    def op(s, text, tag):
        s.g.a(text)
        for w in s.cur: s.q[w].append(tag)
    def wait(s, tag):
        ns = []
        for w in s.cur:
            idx = [i for i, t in enumerate(s.q[w]) if t == tag]
            if idx: ns.append(len(s.q[w]) - 1 - idx[-1])
        if not ns: return
        n = min(min(ns), s.mx)
        s.g.a(f"s_waitcnt {s.name}({n})")
        for w in s.cur: s.q[w] = s.q[w][len(s.q[w])-n:] if n else []
    def all(s):
        s.g.a(f"s_waitcnt {s.name}(0)")
        for w in s.cur: s.q[w] = []

class Gen:
    def __init__(s, **kw):
        s.o = dict(DEF)
        for k in kw: assert k in DEF, k
        s.o.update(kw)
        s.L = []
        s.nlab = 0
        s.NX, s.NW = s.o["nxs"], s.o["nws"]
        s.WB = s.NX*XSLOT
        s.DUMMY = s.WB + s.NW*WSLOT
        s.LDS = s.DUMMY + 4096
        free = [k for k in range(s.NX) if k not in (15 % s.NX,)]
        s.STG = 0 if s.NX == 4 else XSLOT
        assert s.LDS <= 163840
    def a(s, t): s.L.append("    " + t)
    def lab(s, t): s.L.append(t + ":")
    def newlab(s): s.nlab += 1; return f"L_{s.nlab}"
    def srd(s, base, src, size):
        s.a(f"s_mov_b32 s{base}, s{src}"); s.a(f"s_mov_b32 s{base+1}, s{src+1}")
        s.a(f"s_mov_b32 s{base+2}, {size}"); s.a(f"s_mov_b32 s{base+3}, 0x20000")
    def only_wave(s, w, fn, cmp="s_cmp_lg_u32"):
        lab = s.newlab()
        s.a(f"{cmp} s39, {w}")
        s.a(f"s_cbranch_scc1 {lab}")
        old = s.vm.cur
        sel = {"s_cmp_lg_u32": (w,), "s_cmp_ge_u32": tuple(range(w)), "s_cmp_lt_u32": tuple(range(w, 4))}[cmp]
        s.vm.cur = tuple(x for x in sel if x in old)
        fn()
        s.vm.cur = old
        s.lab(lab)

    def mark(s, name):
        if not s.o["stamps"]: return
        if name.startswith("p_") and s.o["mk"] != 1: return
        if name.startswith("q_") and s.o["mk"] != 0: return
        i = len(s.marks); assert i < len(s.mregs), name
        s.marks.append(name)
        s.a(f"s_mem{'real' if s.o['mrt'] else ''}time s[{s.mregs[i]}:{s.mregs[i]+1}]")
    def write_marks(s, role):
        if not s.o["stamps"]: return
        a = s.a
        lab = s.newlab()
        a("s_waitcnt vmcnt(0)")
        a(f"s_mem{'real' if s.o['mrt'] else ''}time s[98:99]")
        a("s_memrealtime s[100:101]")
        a("s_waitcnt lgkmcnt(0)")
        a(f"s_cmp_lg_u32 s39, {s.o['stamps']-1}")
        a(f"s_cbranch_scc1 {lab}")
        a("s_mov_b32 s16, s14"); a("s_mov_b32 s17, s15"); a(f"s_mov_b32 s18, {STAMP + 0x100000}"); a("s_mov_b32 s19, 0x20000")
        a("s_lshl_b32 s45, s2, 8")
        a(f"s_add_u32 s45, s45, {STAMP + role*128}")
        a("v_mov_b32 v1, s45")
        vals = [60, 62] + [s.mregs[t] for t in range(len(s.marks))] + [98]*(17 - len(s.marks)) + [100, 59]
        for i, r in enumerate(vals):
            a(f"v_mov_b32 v2, s{r}")
            a(f"buffer_store_dword v2, v1, s[16:19], 0 offen offset:{4*i}")
        a("s_waitcnt vmcnt(0)")
        s.lab(lab)
        print("marks", role, s.marks + ["end"], file=sys.stderr)

    PQ = 16
    RAW = 24
    SF = 28
    ZT = 36
    PW = 40
    PK = (44, 48)
    TT = (52, 60)
    Q = 128
    PB = 240
    V_PR, V_PG = 68, 69

    def setup(s):
        a, o = s.a, s.o
        a("s_cmp_ge_u32 s2, 256")
        a("s_cbranch_scc1 L_end")
        a("s_load_dwordx8 s[4:11], s[0:1], 0")
        a("s_load_dwordx2 s[12:13], s[0:1], 32")
        a("s_load_dwordx2 s[14:15], s[0:1], 48")
        if o["stamps"] or o["lite"]:
            a("s_memrealtime s[60:61]")
        if o["stamps"]:
            a(f"s_mem{'real' if o['mrt'] else ''}time s[62:63]")
        a("v_lshrrev_b32 v1, 6, v0")
        a("v_and_b32 v0, 63, v0")
        if o["cpf"]:
            n = o["cpf"]
            a("s_getpc_b64 s[40:41]")
            a("s_and_b32 s40, s40, 0xffffff00")
            a("s_lshr_b32 s42, s2, 3")
            a(f"s_mul_i32 s42, s42, {n}")
            a("v_add_u32 v2, s42, v0")
            a("v_lshlrev_b32 v2, 7, v2")
            a(f"v_min_u32 v2, L_end-{NAME}_kernel, v2")
            a("v_readfirstlane_b32 s39, v1")
            a("v_mov_b32 v3, s41")
            a("v_add_co_u32 v2, vcc, s40, v2")
            a("s_nop 1")
            a("v_addc_co_u32 v3, vcc, 0, v3, vcc")
            a("s_cmp_lg_u32 s39, 7")
            a("s_cbranch_scc1 L_nopf")
            a(f"s_mov_b64 exec, {(1 << n) - 1}")
            a("global_load_dword v90, v[2:3], off")
            a("s_mov_b64 exec, -1")
            s.lab("L_nopf")
        xm = o["xcdmap"]
        a("s_and_b32 s36, s2, 7")
        a("s_lshr_b32 s37, s2, 3")
        if xm == 4:
            a("s_and_b32 s38, s37, 3")
            a("s_lshl_b32 s36, s36, 2")
            a("s_add_u32 s36, s36, s38")
            a("s_lshr_b32 s37, s37, 2")
        elif xm == 8:
            a("s_and_b32 s38, s37, 7")
            a("s_and_b32 s40, s36, 3")
            a("s_lshl_b32 s40, s40, 3")
            a("s_and_b32 s36, s36, 4")
            a("s_lshr_b32 s37, s37, 3")
            a("s_add_u32 s37, s37, s36")
            a("s_add_u32 s36, s40, s38")
        elif xm == 1:
            a("s_mov_b32 s38, s36")
            a("s_mov_b32 s36, s37")
            a("s_mov_b32 s37, s38")
        a("v_readfirstlane_b32 s39, v1")
        a("v_and_b32 v1, 31, v0")
        a("v_min_u32 v1, 27, v1")
        a("v_lshrrev_b32 v2, 5, v0")
        a("v_mul_u32_u24 v3, 114688, v2")
        a("v_lshl_add_u32 v3, v1, 4, v3")
        a("s_mul_i32 s40, s36, 448")
        a(f"v_add_u32 v{s.PQ}, s40, v3")
        for i in range(1, 8):
            a(f"v_add_u32 v{s.PQ+i}, {14336*i}, v{s.PQ}")
        a("s_mul_i32 s40, s36, 224")
        a("v_lshlrev_b32 v3, 3, v1")
        a("v_add_u32 v4, s40, v3")
        a("s_lshr_b32 s40, s39, 2")
        a("s_lshl_b32 s50, s37, 1")
        a("s_add_u32 s50, s50, s40")
        a("s_and_b32 s51, s39, 3")
        a("s_lshl_b32 s48, s50, 2")
        a("s_add_u32 s48, s48, s51")
        a("s_mul_i32 s48, s48, 16*14336")
        a("s_mul_i32 s49, s50, 7168")
        a("s_mov_b32 s59, 0")
        a("s_waitcnt lgkmcnt(0)")
        s.srd(20, 6, QB); s.srd(24, 8, SB); s.srd(28, 10, SB)
        a("s_cmp_ge_u32 s39, 4")
        a("s_cbranch_scc1 L_help")

    def s_loads(s):
        s.vm.op(f"buffer_load_dwordx2 v[{s.RAW}:{s.RAW+1}], v4, s[24:27], s49 offen", "s")
        s.vm.op(f"buffer_load_dwordx2 v[{s.RAW+2}:{s.RAW+3}], v4, s[28:31], s49 offen", "s")
    def q_load(s, i):
        r = s.Q + 4*i
        s.vm.op(f"buffer_load_dwordx4 v[{r}:{r+3}], v{s.PQ+i}, s[20:23], s48 offen {s.o['qpol']}", "q")
    def first_loads(s):
        s.s_loads()
        for i in range(8): s.q_load(i)

    def wr_addr(s, slot):
        a = s.a
        a("v_lshrrev_b32 v3, 3, v1")
        a("v_lshlrev_b32 v3, 3, v3")
        a("v_and_b32 v5, 1, v1")
        a("v_lshl_add_u32 v3, v5, 2, v3")
        a("v_bfe_u32 v5, v1, 1, 2")
        a("v_add_u32 v3, v3, v5")
        a("v_cmp_le_u32 vcc, 24, v1")
        a("s_mul_i32 s42, s51, 3584")
        a(f"s_add_u32 s40, s42, {s.WB + slot*WSLOT}")
        a("v_cndmask_b32 v3, v3, v1, vcc")
        a("v_and_b32 v5, 7, v3")
        a("v_xor_b32 v5, v5, v2")
        a("v_lshlrev_b32 v3, 7, v3")
        a("v_add_u32 v3, s40, v3")
        for e in range(4):
            a(f"v_xor_b32 v6, {2*e}, v5")
            a(f"v_lshl_add_u32 v{s.PW+e}, v6, 4, v3")
        a("v_lshlrev_b32 v5, 4, v0")
        a(f"v_add_u32 v{s.V_PR}, s40, v5")
        a("s_lshl_b32 s41, s36, 4")
        a("s_add_u32 s41, s41, s50")
        a(f"s_mul_i32 s41, s41, {WSLOT}")
        a("s_add_u32 s41, s41, s42")
        a(f"v_add_u32 v{s.V_PG}, s41, v5")

    def dequant(s, wofs=None, mark=None):
        a = s.a
        sl = s.RAW
        s.vm.wait("s")
        a(f"v_lshlrev_b32 v{s.SF}, 16, v{sl}"); a(f"v_and_b32 v{s.SF+1}, 0xffff0000, v{sl}")
        a(f"v_lshlrev_b32 v{s.SF+2}, 16, v{sl+1}"); a(f"v_and_b32 v{s.SF+3}, 0xffff0000, v{sl+1}")
        a(f"v_lshlrev_b32 v{s.ZT}, 16, v{sl+2}"); a(f"v_and_b32 v{s.ZT+1}, 0xffff0000, v{sl+2}")
        a(f"v_lshlrev_b32 v{s.ZT+2}, 16, v{sl+3}"); a(f"v_and_b32 v{s.ZT+3}, 0xffff0000, v{sl+3}")
        for e in range(4): a(f"v_mul_f32_e64 v{s.SF+4+e}, -v{s.ZT+e}, v{s.SF+e}")
        s.vm.wait("q")
        if mark: s.mark(mark)
        for e in range(4):
            T, P = s.TT[e & 1], s.PK[e & 1]
            for i in range(8): a(f"v_cvt_f32_i32 v{T+i}, v{s.Q+4*i+e}")
            for i in range(8): a(f"v_fma_f32 v{T+i}, v{T+i}, v{s.SF+e}, v{s.SF+4+e}")
            for i in range(4): a(f"v_cvt_pk_bf16_f32 v{P+i}, v{T+2*i}, v{T+2*i+1}")
            if wofs is None:
                s.lg.op(f"ds_write_b128 v{s.PW+e}, v[{P}:{P+3}]", "w")
            else:
                a(f"v_add_u32 v6, {wofs}, v{s.PW+e}")
                s.lg.op(f"ds_write_b128 v6, v[{P}:{P+3}]", "w")

    def publish_reads(s, va=None):
        for i in range(4):
            r = s.PB + 4*i
            s.lg.op(f"ds_read_b128 v[{r}:{r+3}], v{va or s.V_PR} offset:{i*1024}", ("pb", i))
    def publish_stores(s, which=(0, 1, 2, 3), vg=None):
        a, o = s.a, s.o
        for i in which:
            r = s.PB + 4*i
            s.lg.wait(("pb", i))
            if i == 3: a("s_mov_b32 exec_hi, 0")
            s.vm.op(f"buffer_store_dwordx4 v[{r}:{r+3}], v{vg or s.V_PG}, s[4:7], 0 offen offset:{i*1024} {o['pubpol']}", "pub")
            if i == 3: a("s_mov_b32 exec_hi, -1")
    def flag_store(s, par):
        a = s.a
        s.vm.wait("pub")
        a("s_lshl_b32 s44, s36, 11")
        a("s_lshl_b32 s45, s37, 7")
        a("s_add_u32 s44, s44, s45")
        a("s_lshl_b32 s45, s51, 1")
        a("s_add_u32 s44, s44, s45")
        a(f"s_add_u32 s44, s44, {FOFF + par*1024}")
        a("v_mov_b32 v5, s44")
        a(f"s_xor_b32 s45, s52, {TAGC}")
        a("v_mov_b32 v6, s45")
        a("s_mov_b64 exec, 1")
        s.vm.op(f"buffer_store_short v6, v5, s[4:7], 0 offen {s.o['flagpol']}", "flag")
        a("s_mov_b64 exec, -1")

    def x_addr(s, HX):
        a = s.a
        a("v_lshrrev_b32 v3, 3, v0")
        a("s_lshl_b32 s42, s37, 8")
        a("s_lshl_b32 s43, s51, 6")
        a("s_add_u32 s42, s42, s43")
        a("v_add_u32 v3, s42, v3")
        a("v_lshlrev_b32 v3, 11, v3")
        a("v_and_b32 v5, 7, v0")
        a("v_lshrrev_b32 v6, 4, v0")
        a("v_xor_b32 v5, v5, v6")
        a(f"v_lshl_add_u32 v{HX}, v5, 4, v3")
        a(f"v_xor_b32 v5, 64, v{HX}")
        a("s_lshl_b32 s47, s51, 13")
        for i in range(1, 8):
            src = "v5" if i & 1 else f"v{HX}"
            a(f"v_add_u32 v{HX+i}, {i*16384 - (i&3)*1024}, {src}")

    def stage_of(s, j):
        a = s.a
        if j < 2:
            a("s_lshl_b32 s53, s37, 1")
            if j: a("s_add_u32 s53, s53, 1")
            return
        i = j - 2 if j <= 8 else j - 9
        if s.o["seqmode"]:
            da, hb = SEQ[i]
            a(f"s_add_u32 s53, s37, {da}")
            a("s_and_b32 s53, s53, 3")
            if hb: a("s_andn2_b32 s44, 4, s37")
            else: a("s_and_b32 s44, s37, 4")
            a("s_or_b32 s53, s53, s44")
        else:
            a(f"s_add_u32 s53, s37, {i+1}")
            a("s_and_b32 s53, s53, 7")
        a("s_lshl_b32 s53, s53, 1")
        if j > 8: a("s_add_u32 s53, s53, 1")

    def x_one(s, j, i, HX):
        a, o = s.a, s.o
        if s.xcur != j:
            s.stage_of(j)
            a("s_lshl_b32 s46, s53, 7")
            if o["fixx"]: a("s_lshl_b32 s46, s37, 8")
            s.xcur = j
        if s.m0 != ("x", j, i >> 2):
            a(f"s_add_u32 m0, s47, {(j % s.NX)*XSLOT + (i>>2)*4096}")
            a("s_nop 0")
            s.m0 = ("x", j, i >> 2)
        s.vm.op(f"buffer_load_dwordx4 v{HX+i}, s[16:19], s46 offen offset:{(i&3)*1024} {o['xpol']} lds", ("x", j))
    def x_dma(s, j, HX):
        for i in range(8): s.x_one(j, i, HX)

    ACC = 128
    XF = (8, 24)
    WF = (40, 68)
    VX = {(0,0):96, (1,0):97, (0,1):98, (1,1):99}
    VW = (100, 101)
    V_SW, V_SW6, V_RB, V_GO = 104, 105, 106, 107
    CX = 112
    RB = (112, 240)
    CT = (8, 40)
    def acc(s, j, mt): b = s.ACC + 4*(j*4+mt); return f"v[{b}:{b+3}]"
    def accr(s, j, mt, r): return f"v{s.ACC + 4*(j*4+mt) + r}"

    def c_reads(s, step):
        t, h, b = step // 2, step % 2, step % 2
        xs, ws = t % s.NX, t % s.NW
        xr = [f"ds_read_b128 v[{s.XF[b]+4*mt}:{s.XF[b]+4*mt+3}], v{s.VX[(h, xs>>1)]} offset:{(xs&1)*XSLOT + mt*2048}" for mt in range(4)]
        wr = [f"ds_read_b128 v[{s.WF[b]+4*j}:{s.WF[b]+4*j+3}], v{s.VW[j&1]} offset:{ws*WSLOT + h*7168 + j*512}" for j in range(7)]
        return [wr[0]] + xr + wr[1:]

    def mfma(s, step, j, mt):
        if not s.o["mfma"]: return
        b = step % 2
        c = "0" if step == 0 else s.acc(j, mt)
        s.a(f"v_mfma_f32_16x16x32_bf16 {s.acc(j,mt)}, v[{s.WF[b]+4*j}:{s.WF[b]+4*j+3}], v[{s.XF[b]+4*mt}:{s.XF[b]+4*mt+3}], {c}")

    def c_step(s, step, reads, ex=None):
        ri, n = 0, 0
        for j in range(7):
            for mt in (range(4) if (s.o["order"] == "j" or j % 2 == 0) else range(3, -1, -1)):
                s.mfma(step, j, mt)
                n += 1
                if ri < len(reads) and n >= 2:
                    if s.o["reads"]: s.lg.op(reads[ri], "r")
                    ri += 1
                if ex and n in ex: ex[n]()

    def consumer(s):
        a, o = s.a, s.o
        s.vm = WCtr(s, "vmcnt", 63); s.lg = Ctr(s, "lgkmcnt", 15)
        s.marks = []; s.mregs = list(range(64, 96, 2))
        s.xcur = None; s.m0 = None
        s.mark("role")
        s.first_loads()
        if o["bord"]: a("s_barrier")
        s.mark("qiss")
        if o["x0c"]:
            s.srd(16, 4, XB)
            s.x_addr(s.CX)
        s.srd(4, 14, WSB); s.srd(32, 12, OB)
        a("s_lshl_b32 s44, s36, 7")
        a("s_lshl_b32 s45, s37, 2")
        a("s_add_u32 s44, s44, s45")
        a(f"s_add_u32 s44, s44, {EOFF}")
        a("s_load_dword s52, s[14:15], s44")
        s.wr_addr(0)
        if o["pbc"]:
            a(f"v_add_u32 v108, {WSLOT}, v{s.V_PR}")
            a(f"v_add_u32 v109, {WSLOT}, v{s.V_PG}")
        if o["prio"]: a(f"s_setprio {o['prio']}")
        s.dequant(mark="qA")
        s.lg.all()
        s.mark("deqA")
        if o["delay"]:
            l1, l2 = s.newlab(), s.newlab()
            a(f"s_cmp_lg_u32 s37, {o['delay']-1}")
            a(f"s_cbranch_scc1 {l2}")
            a("s_movk_i32 s44, 600")
            s.lab(l1)
            a("s_nop 15"); a("s_nop 15")
            a("s_sub_u32 s44, s44, 1")
            a("s_cmp_lg_u32 s44, 0")
            a(f"s_cbranch_scc1 {l1}")
            s.lab(l2)
        if not o["nopub"]:
            s.publish_reads()
            s.publish_stores()
        if o["x0c"]: s.x_dma(0, s.CX)
        s.mark("pubiss")
        a("v_and_b32 v1, 15, v0")
        a("v_lshrrev_b32 v2, 4, v0")
        a("v_lshrrev_b32 v3, 1, v1")
        a("v_xor_b32 v3, v2, v3")
        a("v_lshlrev_b32 v3, 4, v3")
        a("v_lshl_add_u32 v3, v1, 7, v3")
        a("s_lshl_b32 s40, s39, 13")
        a(f"v_add_u32 v{s.VX[(0,0)]}, s40, v3")
        a(f"v_xor_b32 v{s.VX[(1,0)]}, 64, v{s.VX[(0,0)]}")
        a(f"v_add_u32 v{s.VX[(0,1)]}, 0x10000, v{s.VX[(0,0)]}")
        a(f"v_add_u32 v{s.VX[(1,1)]}, 0x10000, v{s.VX[(1,0)]}")
        a("v_and_b32 v3, 1, v2")
        a("v_lshl_add_u32 v3, v1, 1, v3")
        a("v_lshrrev_b32 v5, 2, v1")
        a("v_xor_b32 v3, v3, v5")
        a("v_lshlrev_b32 v3, 4, v3")
        a("v_lshrrev_b32 v5, 1, v2")
        a("v_mul_u32_u24 v5, 3584, v5")
        a(f"v_add_u32 v5, {s.WB}, v5")
        a(f"v_add_u32 v{s.VW[0]}, v3, v5")
        a("v_xor_b32 v3, 64, v3")
        a(f"v_add_u32 v{s.VW[1]}, v3, v5")
        a(f"s_mul_i32 s41, s39, {7680 if o['epi'] == 2 else 15360}")
        if s.STG: a(f"s_add_u32 s41, s41, {s.STG}")
        a("v_mul_u32_u24 v4, 240, v1")
        a("v_add_u32 v4, s41, v4")
        a(f"v_lshl_add_u32 v{s.V_SW}, v2, 4, v4")
        a(f"v_lshl_add_u32 v{s.V_SW6}, v2, 3, v4")
        a("v_min_u32 v4, 55, v0")
        a("v_mul_u32_u24 v5, 37, v4")
        a("v_lshrrev_b32 v5, 9, v5")
        a("v_mul_u32_u24 v3, 14, v5")
        a("v_sub_u32 v3, v4, v3")
        a("v_mul_u32_u24 v7, 240, v5")
        a("v_lshl_add_u32 v7, v3, 4, v7")
        a(f"v_add_u32 v{s.V_RB}, s41, v7")
        a("s_lshl_b32 s42, s37, 8")
        a("s_lshl_b32 s43, s39, 6")
        a("s_add_u32 s42, s42, s43")
        a("s_mul_i32 s42, s42, 7168")
        a("s_mul_i32 s43, s36, 224")
        a("s_add_u32 s42, s42, s43")
        a("v_mul_u32_u24 v7, 7168, v5")
        a("v_lshl_add_u32 v7, v3, 4, v7")
        a(f"v_add_u32 v{s.V_GO}, s42, v7")
        if o["fa"] == 0 and not o["nopub"]:
            s.flag_store(0); s.mark("flagA")
        if not o["reads"]:
            for r in range(8, 96): a(f"v_mov_b32 v{r}, 0")
        s.vm.wait(("x", 0))
        a("s_barrier")
        s.mark("B0")
        if o["reads"]:
            for r in s.c_reads(0): s.lg.op(r, "r")
        nsteps = 2*NS
        for step in range(nsteps):
            if o["epi"] == 2 and step == 28:
                s.skew_tail(); break
            s.lg.all()
            if step == 1 and o["fa"] == 2 and not o["nopub"]:
                s.flag_store(0); s.mark("flagA")
            if step == 2:
                if o["fa"] == 1 and not o["nopub"]:
                    s.flag_store(0); s.mark("flagA")
                a("s_barrier")
                s.mark("B1")
                if o["reads"]:
                    for r in s.c_reads(2): s.lg.op(r, "r")
                if o["pbc"] and not o["nopub"]:
                    s.publish_reads(108)
                s.lg.all()
            if step % 2 == 1 and 1 < step < nsteps - 1:
                t = (step+1)//2
                a("s_barrier")
                if t in (2, 3, 4, 6, 8, 10, 15): s.mark(f"B{t}")
            if step == nsteps - 1 and o["epi"] and o["store"]:
                s.last_step(step)
            else:
                ex = {}
                if o["pbc"] and not o["nopub"]:
                    if step == o["pbs"]:
                        for i in range(4): ex[16 + 3*i] = (lambda i=i: s.publish_stores([i], 109))
                    if step == o["fbs"]: ex[20] = (lambda: s.flag_store(1))
                rd = s.c_reads(step+1) if (step + 1 < nsteps and step != 1) else []
                if o["epi"] == 2 and step == 27: rd = [t for t, _ in s.h_reads(0)]
                s.c_step(step, rd, ex)
        s.mark("mainend")
        if not (o["epi"] and o["store"]): s.epilogue_simple()
        s.write_marks(0)
        if o["lite"]:
            a("s_waitcnt vmcnt(0)")
            a("s_memrealtime s[100:101]")
            a("s_mov_b32 s16, s14"); a("s_mov_b32 s17, s15"); a(f"s_mov_b32 s18, {STAMP + 0x100000}"); a("s_mov_b32 s19, 0x20000")
            a("s_lshl_b32 s45, s2, 8")
            a("s_lshl_b32 s44, s39, 3")
            a("s_add_u32 s45, s45, s44")
            a(f"s_add_u32 s45, s45, {STAMP}")
            a("v_mov_b32 v1, s45")
            a("s_waitcnt lgkmcnt(0)")
            a("v_mov_b32 v2, s60"); a("v_mov_b32 v3, s100")
            a("buffer_store_dwordx2 v[2:3], v1, s[16:19], 0 offen")
        a("s_endpgm")

    def h_reads(s, u):
        st, hf = 28 + u % 4, u // 4
        t, h, b = st // 2, st % 2, u % 2
        xs, ws = t % s.NX, t % s.NW
        r = [(f"ds_read_b128 v[{s.XF[b]+4*m}:{s.XF[b]+4*m+3}], v{s.VX[(h, xs>>1)]} offset:{(xs&1)*XSLOT + (2*hf+m)*2048}", ("hx", u)) for m in range(2)]
        r += [(f"ds_read_b128 v[{s.WF[b]+4*j}:{s.WF[b]+4*j+3}], v{s.VW[j&1]} offset:{ws*WSLOT + h*7168 + j*512}", ("hw", u, j)) for j in range(7)]
        return r
    def skew_tail(s):
        a, o = s.a, s.o
        s.lg.q = [tag for _, tag in s.h_reads(0)]
        def tile_ops(mt, pol):
            R = s.RB[mt & 1]
            return s.cvt_ops(mt, skew=True) + s.rb_ops(mt, skew=True) + s.st_ops(mt, pol)
        ops = tile_ops(0, o["stpol1"]) + tile_ops(1, o["stpol1"])
        k = 0; tot = 4*14 - 2; n = 0
        for u in range(8):
            b, hf = u % 2, u // 4
            if u == 1:
                a("s_barrier")
                s.mark("B15")
            rd = s.h_reads(u + 1) if u < 7 else []
            ri = 0
            for j in range(7):
                s.lg.wait(("hw", u, j))
                for m in (range(2) if j % 2 == 0 else (1, 0)):
                    mt = 2*hf + m
                    a(f"v_mfma_f32_16x16x32_bf16 {s.acc(j,mt)}, v[{s.WF[b]+4*j}:{s.WF[b]+4*j+3}], v[{s.XF[b]+4*m}:{s.XF[b]+4*m+3}], {s.acc(j,mt)}")
                    if ri < len(rd):
                        s.lg.op(*rd[ri]); ri += 1
                    if u >= 4:
                        n += 1
                        if n > 2:
                            while k < len(ops) and k * tot < (n - 2) * len(ops): ops[k](); k += 1
        assert k == len(ops)
        a("s_nop 1")
        c2, c3 = s.cvt_ops(2, skew=True), s.cvt_ops(3, skew=True)
        a("s_nop 7")
        for f in c2: f()
        r2 = s.rb_ops(2, skew=True)
        for f in c3[:5]: f()
        for f in r2: f()
        for f in c3[5:]: f()
        st2 = s.st_ops(2)
        for f in st2[:2]: f()
        for f in s.rb_ops(3, skew=True): f()
        for f in st2[2:]: f()
        for f in s.st_ops(3): f()

    def cvt_ops(s, mt, skew=False):
        if skew:
            regs = (16, 20, 32, 36); off = (mt & 1)*3840
            ops = []
            for u in range(3):
                d = regs[u]
                for q, (jj, r) in enumerate(((0,0),(0,2),(1,0),(1,2))):
                    ops.append(lambda d=d, q=q, jj=jj, r=r, u=u: s.a(f"v_cvt_pk_bf16_f32 v{d+q}, {s.accr(2*u+jj,mt,r)}, {s.accr(2*u+jj,mt,r+1)}"))
                ops.append(lambda d=d, u=u: s.lg.op(f"ds_write_b128 v{s.V_SW}, v[{d}:{d+3}] offset:{off + u*64}", ("w", mt)))
            d = regs[3]
            ops.append(lambda: s.a(f"v_cvt_pk_bf16_f32 v{d}, {s.accr(6,mt,0)}, {s.accr(6,mt,1)}"))
            ops.append(lambda: s.a(f"v_cvt_pk_bf16_f32 v{d+1}, {s.accr(6,mt,2)}, {s.accr(6,mt,3)}"))
            ops.append(lambda: s.lg.op(f"ds_write_b64 v{s.V_SW6}, v[{d}:{d+1}] offset:{off + 192}", ("w", mt)))
            return ops
        t = s.CT[mt & 1]
        ops = []
        for u in range(3):
            d = t + 4*u
            for q, (jj, r) in enumerate(((0,0),(0,2),(1,0),(1,2))):
                ops.append(lambda d=d, q=q, jj=jj, r=r, u=u: s.a(f"v_cvt_pk_bf16_f32 v{d+q}, {s.accr(2*u+jj,mt,r)}, {s.accr(2*u+jj,mt,r+1)}"))
            ops.append(lambda d=d, u=u: s.lg.op(f"ds_write_b128 v{s.V_SW}, v[{d}:{d+3}] offset:{mt*3840 + u*64}", ("w", mt)))
        d = t + 12
        ops.append(lambda: s.a(f"v_cvt_pk_bf16_f32 v{d}, {s.accr(6,mt,0)}, {s.accr(6,mt,1)}"))
        ops.append(lambda: s.a(f"v_cvt_pk_bf16_f32 v{d+1}, {s.accr(6,mt,2)}, {s.accr(6,mt,3)}"))
        ops.append(lambda: s.lg.op(f"ds_write_b64 v{s.V_SW6}, v[{d}:{d+1}] offset:{mt*3840 + 192}", ("w", mt)))
        return ops
    def rb_ops(s, mt, skew=False):
        R = s.RB[mt & 1]
        m = (mt & 1) if skew else mt
        ops = [] if skew else [lambda: s.lg.wait(("w", mt))]
        for i in range(4):
            ops.append(lambda i=i: s.lg.op(f"ds_read_b128 v[{R+4*i}:{R+4*i+3}], v{s.V_RB} offset:{960*(4*m+i)}", ("rb", mt, i)))
        return ops
    def st_ops(s, mt, pol=None):
        R = s.RB[mt & 1]
        pol = s.o['stpol'] if pol is None else pol
        ops = []
        for i in range(4):
            def f(i=i):
                s.a(f"s_mov_b32 s44, {28672*(4*mt+i)}")
                s.lg.wait(("rb", mt, i))
                s.vm.op(f"buffer_store_dwordx4 v[{R+4*i}:{R+4*i+3}], v{s.V_GO}, s[32:35], s44 offen {pol}", "st")
            ops.append(f)
        return ops

    def last_step(s, step):
        a, o = s.a, s.o
        if not o["mfma"]:
            for r in range(128, 240): a(f"v_mov_b32 v{r}, 0")
        def group(mt, ops, start):
            k = 0
            for j in range(7):
                s.mfma(step, j, mt)
                if j + 1 >= start:
                    rem = 7 - j
                    n = -(-(len(ops) - k) // rem)
                    for _ in range(n):
                        if k < len(ops): ops[k](); k += 1
            assert k == len(ops)
        group(0, [], 1)
        group(1, s.cvt_ops(0), 2)
        c1 = s.cvt_ops(1)
        group(2, c1[:5] + s.rb_ops(0) + c1[5:], 2)
        c2 = s.cvt_ops(2)
        st0 = s.st_ops(0)
        group(3, c2[:5] + s.rb_ops(1) + c2[5:10] + st0[:2] + c2[10:] + st0[2:], 2)
        c3 = s.cvt_ops(3)
        st1 = s.st_ops(1)
        a("s_nop 0")
        for f in s.rb_ops(2) + c3[:5] + st1[:2] + c3[5:10] + st1[2:] + c3[10:]: f()
        st2 = s.st_ops(2)
        for f in s.rb_ops(3): f()
        for f in st2: f()
        for f in s.st_ops(3): f()

    def epilogue_simple(s):
        a, o = s.a, s.o
        if not o["store"]: return
        if not o["mfma"]:
            for r in range(128, 240): a(f"v_mov_b32 v{r}, 0")
        a("s_nop 7"); a("s_nop 1")
        for mt in range(4):
            for f in s.cvt_ops(mt): f()
            for f in s.rb_ops(mt): f()
            for f in s.st_ops(mt): f()

    HX = 72
    V_WD = 80
    V_T = (81, 82)
    V_TD, V_E, V_TAG, V_FA, V_FL = 83, 84, 85, 86, 88

    def w_dma(s, j):
        a, o = s.a, s.o
        a(f"s_mul_i32 s54, s53, {WSLOT}")
        if o["fixw"]: a("s_mov_b32 s54, 0")
        a("s_mov_b32 m0, s56")
        a("s_add_u32 s54, s54, s57")
        s.m0 = None
        def one(i): s.vm.op(f"buffer_load_dwordx4 v{s.V_WD}, s[4:7], s54 offen offset:{i*1024} {o['wpol']} lds", ("w", j))
        for i in range(3): one(i)
        s.only_wave(2, lambda: one(3), "s_cmp_ge_u32")

    def touch_addr(s):
        a, o = s.a, s.o
        if o["tfull"]:
            a("v_lshrrev_b32 v7, 3, v0")
            a("v_lshlrev_b32 v7, 11, v7")
            a("v_and_b32 v6, 7, v0")
            a(f"v_lshl_add_u32 v{s.V_T[0]}, v6, 7, v7")
            a(f"v_add_u32 v{s.V_T[1]}, 1024, v{s.V_T[0]}")
            a("s_lshl_b32 s40, s37, 8")
            a("s_lshl_b32 s41, s36, 3")
            a("s_add_u32 s40, s40, s41")
            a("s_lshl_b32 s58, s40, 11")
            return
        seq = [(0,0)] + SEQ if o["seqmode"] else None
        a("v_bfe_u32 v5, v0, 1, 2")
        a("v_lshrrev_b32 v7, 3, v0")
        a("v_lshlrev_b32 v7, 11, v7")
        a("v_and_b32 v6, 1, v0")
        a("v_lshl_add_u32 v7, v6, 7, v7")
        a("s_lshl_b32 s40, s37, 8")
        a("s_lshl_b32 s41, s36, 3")
        a("s_add_u32 s40, s40, s41")
        a("s_lshl_b32 s58, s40, 11")
        for k in range(2):
            if o["seqmode"]:
                tab = 0
                for m in range(4):
                    da, hb = seq[4*k + m]
                    tab |= (da | (hb << 2)) << (3*m)
                a("v_mul_u32_u24 v6, 3, v5")
                a(f"s_movk_i32 s44, {tab}")
                a("v_lshrrev_b32_e64 v6, v6, s44")
                a("v_add_u32 v3, s37, v6")
                a("v_and_b32 v3, 3, v3")
                a("v_xor_b32 v6, s37, v6")
                a("v_and_b32 v6, 4, v6")
                a("v_or_b32 v3, v3, v6")
            else:
                a(f"s_add_u32 s44, s37, {4*k}")
                a("v_add_u32 v3, s44, v5")
                a("v_and_b32 v3, 7, v3")
            a(f"v_lshl_add_u32 v{s.V_T[k]}, v3, 8, v7")
    def touch(s, k, lo=0, hi=4):
        m = sum(3 << (2*p) for p in range(lo, hi)) * 0x01010101
        def f():
            if m != 0xffffffff: s.a(f"s_mov_b32 exec_lo, {hex(m)}"); s.a(f"s_mov_b32 exec_hi, {hex(m)}")
            s.vm.op(f"buffer_load_dword v{s.V_TD}, v{s.V_T[k]}, s[16:19], s58 offen {s.o['txpol']}", "t")
            if m != 0xffffffff: s.a("s_mov_b64 exec, -1")
        if m: s.only_wave(k, f)
    def touch1(s):
        if s.o["tfull"]: s.touch(0); s.touch(1)
        else: s.touch(0, 0, s.o["t1n"])
    def touch2(s):
        if s.o["tfull"]: return
        s.touch(0, s.o["t1n"], 4); s.touch(1)

    def poll_issue(s, par):
        s.a("s_mov_b64 exec, 0xff")
        s.vm.op(f"buffer_load_dwordx2 v[{s.V_FL}:{s.V_FL+1}], v{s.V_FA}, s[4:7], 0 offen offset:{par*1024} sc1", "poll")
        s.a("s_mov_b64 exec, -1")
    def poll_eval(s, par):
        a = s.a
        s.vm.wait("poll")
        a(f"v_cmp_eq_u32 vcc, v{s.V_FL}, v{s.V_TAG}")
        a(f"v_cmp_eq_u32 s[44:45], v{s.V_FL+1}, v{s.V_TAG}")
        a("s_nop 1")
        a(f"s_and_b32 {'s90' if par else 's89'}, s44, vcc_lo")
    def spin(s, done):
        a = s.a
        lp = s.newlab()
        a("s_lshl_b32 s93, 1, s99")
        s.lab(lp)
        a("s_mov_b32 exec_hi, 0")
        a("s_mov_b32 exec_lo, s93")
        a(f"buffer_load_dwordx2 v[{s.V_FL}:{s.V_FL+1}], v{s.V_FA}, s[4:7], s91 offen sc1")
        a("s_waitcnt vmcnt(0)")
        a(f"v_cmp_ne_u32 vcc, v{s.V_FL}, v{s.V_TAG}")
        a(f"v_cmp_ne_u32 s[44:45], v{s.V_FL+1}, v{s.V_TAG}")
        a("s_mov_b64 exec, -1")
        a("s_nop 0")
        a("s_or_b32 s44, s44, vcc_lo")
        if s.o["forcefb"] != 2: a(f"s_cbranch_scc0 {done}")
        a("s_sub_u32 s88, s88, 1")
        a("s_cmp_lg_u32 s88, 0")
        a(f"s_cbranch_scc1 {lp}")
        a("s_add_u32 s59, s59, 1")
    def ensure(s, j):
        a, o = s.a, s.o
        par = 1 if j > 8 else 0
        rdy = "s90" if par else "s89"
        a(f"s_add_u32 s56, s55, {s.WB + (j % s.NW)*WSLOT}")
        if o["nosync"]: return
        ok = s.newlab()
        a("s_lshr_b32 s99, s53, 1")
        a(f"s_bitcmp1_b32 {rdy}, s99")
        if o["forcefb"] == 0: a(f"s_cbranch_scc1 {ok}")
        a(f"s_movk_i32 s91, {par*1024}")
        if not o["fallback"]:
            a(f"s_mov_b32 s88, {SPIN}")
            s.spin(ok)
            s.lab(ok)
            return
        a(f"s_mov_b32 s92, {s.WB + (j % s.NW)*WSLOT}")
        a("s_getpc_b64 s[94:95]")
        l2 = s.newlab()
        s.lab(l2)
        a(f"s_add_u32 s94, s94, L_slow-{l2}")
        a("s_addc_u32 s95, s95, 0")
        a("s_swappc_b64 s[96:97], s[94:95]")
        s.lab(ok)

    def slow_handler(s):
        a, o = s.a, s.o
        s.lab("L_slow")
        done, fb = s.newlab(), s.newlab()
        a("s_cmp_lg_u32 s59, 0")
        a(f"s_cselect_b32 s88, 1, {SPIN}")
        if o["forcefb"]: a("s_mov_b32 s88, 1")
        s.spin(done)
        svm, slg = s.vm, s.lg
        a("s_mul_i32 s49, s53, 7168")
        a("s_lshl_b32 s48, s53, 2")
        a("s_mul_i32 s48, s48, 16*14336")
        a("s_mul_i32 s45, s51, 3584")
        a(f"s_add_u32 s45, s45, {s.WB + WSLOT}")
        a("s_sub_u32 s92, s92, s45")
        a("s_movk_i32 s88, 4")
        s.lab(fb)
        s.vm = WCtr(s, "vmcnt", 63); s.lg = Ctr(s, "lgkmcnt", 15)
        s.first_loads()
        s.dequant(wofs="s92")
        s.lg.all()
        s.vm, s.lg = svm, slg
        a(f"s_add_u32 s48, s48, {16*14336}")
        a("s_add_u32 s92, s92, 3584")
        a("s_sub_u32 s88, s88, 1")
        a("s_cmp_lg_u32 s88, 0")
        a(f"s_cbranch_scc1 {fb}")
        a(f"s_mov_b32 s56, {s.DUMMY}")
        s.lab(done)
        a("s_setpc_b64 s[96:97]")

    def helper(s):
        a, o = s.a, s.o
        s.vm = WCtr(s, "vmcnt", 63); s.lg = Ctr(s, "lgkmcnt", 15)
        s.lab("L_help")
        assert not (o["stamps"] and o["fallback"])
        s.marks = []; s.mregs = list(range(64, 88, 2)) + [8, 10, 12, 32]
        s.xcur = None; s.m0 = None
        s.mark("role")
        a("s_sub_u32 s39, s39, 4")
        s.srd(16, 4, XB); s.srd(4, 14, WSB)
        if o["touch"]:
            s.touch_addr()
            if o["t1pos"] == 0: s.touch1()
        s.x_addr(s.HX)
        if o["bord"]: a("s_barrier")
        s.mark("ord")
        if o["touch"] and o["t1pos"] == 1: s.touch1()
        s.s_loads()
        x0 = not o["x0c"]
        if o["ilv"] == 1:
            for i in range(8):
                s.q_load(i)
                if x0: s.x_one(0, i, s.HX)
        elif o["ilv"] == 3:
            for i in range(4): s.q_load(i)
            if x0: s.x_dma(0, s.HX)
            for i in range(4, 8): s.q_load(i)
        elif o["ilv"] == 0:
            if x0: s.x_dma(0, s.HX)
            for i in range(8): s.q_load(i)
        else:
            for i in range(8): s.q_load(i)
            if x0: s.x_dma(0, s.HX)
        if o["touch"] and o["t1pos"] == 2: s.touch1()
        s.mark("qiss")
        a("s_lshl_b32 s44, s36, 7")
        a(f"s_add_u32 s44, s44, {EOFF}")
        a("v_and_b32 v5, 7, v0")
        a(f"v_lshlrev_b32 v{s.V_FA}, 7, v5")
        a("v_lshlrev_b32 v5, 2, v5")
        s.vm.op(f"buffer_load_dword v{s.V_E}, v5, s[4:7], s44 offen", "e")
        a("s_lshl_b32 s45, s37, 2")
        a("s_add_u32 s44, s44, s45")
        a("s_load_dword s52, s[14:15], s44")
        a("s_lshl_b32 s45, s36, 11")
        a(f"s_add_u32 s45, s45, {FOFF}")
        a(f"v_add_u32 v{s.V_FA}, s45, v{s.V_FA}")
        s.wr_addr(1)
        a("s_lshl_b32 s55, s39, 12")
        a("s_cmp_eq_u32 s39, 3")
        a("s_cselect_b32 s44, 1024, 0")
        a("s_sub_u32 s55, s55, s44")
        a("v_lshlrev_b32 v5, 4, v0")
        a(f"v_add_u32 v{s.V_WD}, s55, v5")
        a(f"s_mul_i32 s57, s36, {16*WSLOT}")
        a("s_mov_b32 s89, 0")
        s.vm.wait(("x", 0))
        a("s_barrier")
        s.mark("B0")
        nxt = 2
        if o["x1pos"] == 0: s.x_dma(1, s.HX)
        if o["xprepos"] == 0 and o["x1pos"] == 0:
            for _ in range(o["xpre"]):
                s.x_dma(nxt, s.HX); nxt += 1
        if o["touch"] and o["t2pos"] == 0: s.touch2()
        s.dequant(mark="qB")
        s.lg.all()
        s.mark("deqB")
        if not o["nopub"] and not o["pbc"]: s.publish_reads()
        s.vm.wait("e")
        a(f"v_xor_b32 v5, {TAGC}, v{s.V_E}")
        a("v_and_b32 v5, 0xffff, v5")
        a(f"v_mul_u32_u24 v{s.V_TAG}, 0x10001, v5")
        if o["touch"] and o["t2pos"] == 99: s.touch2()
        if o["x1pos"] == 1: s.x_dma(1, s.HX)
        if o["poll0"] and o["pollpos"] == 0: s.poll_issue(0)
        if nxt == 2 and o["xprepos"] != 2:
            for _ in range(o["xpre"]):
                s.x_dma(nxt, s.HX); nxt += 1
        if o["poll0"] and o["pollpos"] == 1: s.poll_issue(0)
        wnext = 2
        if o["w2pre"]:
            assert s.NW == 3
            if o["poll0"]: s.poll_eval(0)
            s.stage_of(2); s.xcur = None
            s.ensure(2)
            s.mark("ens2")
            s.w_dma(2)
            s.poll_issue(0)
            wnext = 3
        if nxt == 2:
            for _ in range(o["xpre"]):
                s.x_dma(nxt, s.HX); nxt += 1
        if o["hprio"]: a(f"s_setprio {o['hprio']}")
        s.vm.wait(("x", 1))
        s.lg.all()
        a("s_barrier")
        s.mark("B1")
        xq = [(j, i) for j in range(nxt, NS) for i in range(8)]
        quota = [int(x) for x in o["quota"].split(",")]
        pb = [int(x) for x in o["pubB"].split(",")]
        for t in range(1, NS - 1):
            n = quota[t-1]
            def do_w():
                nonlocal wnext, n
                j = wnext
                assert j <= 8 or t > o["pollB"] or o["nopub"]
                assert not o["pbc"] or (o["fbs"] <= 2*o["pollB"] - 2 and o["pbs"] < o["fbs"])
                if (j == 2 and o["poll0"]) or j == 3 or j == 9: s.poll_eval(1 if j == 9 else 0)
                s.stage_of(j); s.xcur = None
                s.ensure(j)
                if j == 2: s.mark("ens2")
                s.w_dma(j)
                if j == 2: s.poll_issue(0)
                wnext += 1; n -= 4
            if wnext == t + 1: do_w()
            while xq and xq[0][0] <= t + s.NX - 1 and (n > 0 or xq[0][0] <= t + 1):
                j, i = xq.pop(0)
                s.x_one(j, i, s.HX); n -= 1
                if i == 7 and s.NW == 3 and wnext == j and wnext <= t + 2 and n >= 4: do_w()
            if s.NW == 3 and wnext < NS and wnext <= t + 2 and n >= 4: do_w()
            if o["touch"] and o["t2pos"] == t: s.touch2()
            if not o["nopub"]:
                if not o["pbc"]:
                    s.publish_stores([i for i in range(4) if pb[i] == t])
                    if t == o["flagB"]: s.flag_store(1)
                if t == o["pollB"]: s.poll_issue(1)
            if t <= 2: s.mark(f"p_iss{t}")
            s.vm.wait(("x", t+1))
            if t <= 2: s.mark(f"p_x{t+1}")
            s.vm.wait(("w", t+1))
            a("s_barrier")
            if t in (1, 2, 3): s.mark(f"q_B{t+1}")
        assert not xq and wnext == NS
        def ep():
            a("s_lshl_b32 s44, s36, 7")
            a("s_lshl_b32 s45, s37, 2")
            a("s_add_u32 s44, s44, s45")
            a(f"s_add_u32 s44, s44, {EOFF}")
            a("s_add_u32 s45, s52, 1")
            a("v_mov_b32 v5, s44")
            a("v_mov_b32 v6, s45")
            a("s_mov_b64 exec, 1")
            s.vm.op("buffer_store_dword v6, v5, s[4:7], 0 offen sc1", "ep")
            a("s_mov_b64 exec, -1")
        s.only_wave(0, ep)
        s.write_marks(1)
        a("s_endpgm")
        if o["fallback"]: s.slow_handler()

    def build(s):
        s.setup()
        s.consumer()
        s.helper()
        s.lab("L_end")
        s.a("s_endpgm")
        body = "\n".join(s.L) + "\n"
        hdr = open("cdna_kernels/%s.s.ref" % NAME).read().split("; Override launch")[0]
        out = hdr + f"; @launch grid=(256,1,1) block=(512,1,1) lds={s.LDS}\n"
        out += f'.amdgcn_target "amdgcn-amd-amdhsa--gfx950"\n.text\n.globl {NAME}_kernel\n.p2align 8\n.type {NAME}_kernel,@function\n{NAME}_kernel:\n'
        out += body
        out += f""".section .rodata,"a"
.p2align 6
.amdhsa_kernel {NAME}_kernel
  .amdhsa_next_free_vgpr 256
  .amdhsa_next_free_sgpr 102
  .amdhsa_accum_offset 256
  .amdhsa_group_segment_fixed_size 0
  .amdhsa_kernarg_size 56
  .amdhsa_user_sgpr_count 2
  .amdhsa_user_sgpr_kernarg_segment_ptr 1
  .amdhsa_system_sgpr_workgroup_id_x 1
  .amdhsa_float_denorm_mode_32 3
.end_amdhsa_kernel
"""
        return out

if __name__ == "__main__":
    out = sys.argv[1]
    kw = {}
    for x in sys.argv[2:]:
        k, v = x.split("=")
        kw[k] = int(v) if v.lstrip("-").isdigit() else (v.replace("_", " ").replace("none", "") if k.endswith("pol") else v)
    open(out, "w").write(Gen(**kw).build())
```
